```python
import torch

def _softmax(x, axis=-1):
    return torch.softmax(x, dim=axis)

def _gelu(x):
    return torch.nn.functional.gelu(x, approximate='tanh')

def _silu(x):
    return torch.nn.functional.silu(x)

def _sigmoid(x):
    return torch.sigmoid(x)

def _layernorm(x, axis=-1, eps=1e-05):
    m = x.mean(dim=axis, keepdim=True)
    v = x.var(dim=axis, keepdim=True, unbiased=False)
    return (x - m) / torch.sqrt(v + eps)

def _scatter_add(tgt, idx, src, axis=0):
    return tgt.clone().index_add_(axis, idx, src)

def _segment_sum(src, seg, n):
    out = torch.zeros((n,) + src.shape[1:], dtype=src.dtype)
    return out.index_add_(0, seg, src)

def _pad(x, pw):
    flat = tuple((v for pair in reversed(pw) for v in pair))
    return torch.nn.functional.pad(x, flat)
kernel_name = 'adaLN_cond__gqa_block_cached__mixer_token_mlp__decode'

def setup_inputs():

    _w = lambda a: (lambda t: t.to(torch.bfloat16) if t.is_floating_point() else t)(torch.as_tensor(a))

    def _A_setup():
        B, Sq, D = (2, 1, 1024)
        Hq, Hkv, Sk, Dh = (32, 4, 32768, 128)
        assert Hq % Hkv == 0, (Hq, Hkv)
        return {'x': _w((lambda *s: torch.randn(*s, dtype=torch.bfloat16) * 0.05)(B, Sq, D)), 'k_cache': _w((lambda *s: torch.randn(*s, dtype=torch.bfloat16) * 3.2)(B, Hkv, Sk, Dh)), 'v_cache': _w((lambda *s: torch.randn(*s, dtype=torch.bfloat16) * 1.6)(B, Hkv, Sk, Dh)), 'wq': _w((lambda *s: torch.randn(*s, dtype=torch.bfloat16) * 3.2)(D, Hq * Dh) * D ** (-0.5)), 'wo': _w((lambda *s: torch.randn(*s, dtype=torch.bfloat16) * 1.6)(Hq * Dh, D) * (Hq * Dh) ** (-0.5))}
    _A_in = _A_setup()

    def _B_setup():
        B, S, D, F = (2, 1, 1024, 3584)
        return {'x': _w((lambda *s: torch.randn(*s, dtype=torch.bfloat16) * 0.05)(B, S, D)), 'w1': _w((lambda *s: torch.randn(*s, dtype=torch.bfloat16) * 1.6)(S, F) * S ** (-0.5)), 'b1': _w((lambda *s: torch.randn(*s, dtype=torch.bfloat16) * 1.6)(F) * 0.02), 'w2': _w((lambda *s: torch.randn(*s, dtype=torch.bfloat16) * 1.6)(F, S) * F ** (-0.5)), 'b2': _w((lambda *s: torch.randn(*s, dtype=torch.bfloat16) * 1.6)(S) * 0.02)}
    _B_in = _B_setup()
    return {'A_x': _A_in['x'], 'A_k_cache': _A_in['k_cache'], 'A_v_cache': _A_in['v_cache'], 'A_wq': _A_in['wq'], 'A_wo': _A_in['wo'], 'B_x': _B_in['x'], 'B_w1': _B_in['w1'], 'B_b1': _B_in['b1'], 'B_w2': _B_in['w2'], 'B_b2': _B_in['b2'], 'c': _w((lambda *s: torch.randn(*s, dtype=torch.bfloat16) * 0.05)(2, 1024) * 8.0), 'w_mod': _w((lambda *s: torch.randn(*s, dtype=torch.bfloat16) * 0.05)(1024, 6 * 1024) * 1024 ** (-0.5) * 8.0)}

def reference(A_x, A_k_cache, A_v_cache, A_wq, A_wo, B_x, B_w1, B_b1, B_w2, B_b2, c, w_mod):

    def _A_ref(x, k_cache, v_cache, wq, wo):
        B, Sq, D = x.shape
        Hq, Dh = (32, 128)
        Hkv = k_cache.shape[1]
        rep = Hq // Hkv
        q = (lambda x, *d: x.permute(*d))((x @ wq).reshape(B, Sq, Hq, Dh), 0, 2, 1, 3)
        k = (lambda x, n, axis: torch.repeat_interleave(x, n, dim=axis))(k_cache, rep, axis=1)
        v = (lambda x, n, axis: torch.repeat_interleave(x, n, dim=axis))(v_cache, rep, axis=1)
        scores = torch.einsum('bhqd,bhkd->bhqk', q, k) * Dh ** (-0.5)
        p = _softmax(scores, axis=-1)
        o = torch.einsum('bhqk,bhkd->bhqd', p, v)
        return (lambda x, *d: x.permute(*d))(o, 0, 2, 1, 3).reshape(B, Sq, Hq * Dh) @ wo

    def _B_ref(x, w1, b1, w2, b2):
        B, S, D = x.shape
        h = _layernorm(x, axis=-1)
        u = torch.einsum('bsd,sf->bdf', h, w1) + b1
        u = _gelu(u)
        y = torch.einsum('bdf,fs->bds', u, w2) + b2
        return (lambda x, *d: x.permute(*d))(y, 0, 2, 1)
    x = A_x
    mod = (_silu(c) @ w_mod).reshape(c.shape[0], 6, 1, -1)
    sa, ca, ga, sb, cb, gb = (mod[:, 0].clone(), mod[:, 1].clone(), mod[:, 2].clone(), mod[:, 3].clone(), mod[:, 4].clone(), mod[:, 5].clone())
    h = _layernorm(x, axis=-1) * (1 + ca) + sa
    x = x + ga * _A_ref(h, A_k_cache, A_v_cache, A_wq, A_wo)
    h = _layernorm(x, axis=-1) * (1 + cb) + sb
    x = x + gb * _B_ref(h, B_w1, B_b1, B_w2, B_b2)
    return x
```

```python
import re, struct

def f2u(x): return struct.unpack("<I", struct.pack("<f", x))[0]
def hexf(x): return "0x%08x" % f2u(x)

TRANS = ("v_exp_f32","v_log_f32","v_rcp_f32","v_rsq_f32","v_sqrt_f32","v_sin_f32","v_cos_f32")
REG_RE = re.compile(r"^(-|\|)?(abs\()?([vsa])(\d+|\[(\d+):(\d+)\])\)?\|?$")

def regs_of(tok):
    tok = tok.strip()
    if tok in ("vcc",): return {("s",106),("s",107)}
    if tok == "vcc_lo": return {("s",106)}
    if tok == "vcc_hi": return {("s",107)}
    if tok == "exec": return {("s",126),("s",127)}
    if tok == "m0": return {("s",124)}
    m = REG_RE.match(tok)
    if not m: return set()
    k = m.group(3)
    if m.group(5) is not None:
        return {(k,i) for i in range(int(m.group(5)), int(m.group(6))+1)}
    return {(k,int(m.group(4)))}

class Ins:
    def __init__(s, text):
        s.text = text
        t = text.split(";")[0].strip()
        parts = t.split(None, 1)
        s.op = parts[0]
        ops = []
        if len(parts) > 1:
            cur = ""; depth = 0
            for ch in parts[1]:
                if ch == "[": depth += 1
                if ch == "]": depth -= 1
                if ch == "," and depth == 0: ops.append(cur); cur = ""
                else: cur += ch
            ops.append(cur)
            ops = [o.strip() for o in ops]
            ops[-1] = ops[-1].split()[0] if ops[-1] else ""
        s.ops = ops
        op = s.op
        s.mfma = op.startswith("v_mfma")
        s.valu = op.startswith("v_") and not s.mfma
        s.trans = any(op.startswith(x) for x in TRANS)
        s.vmem = op.startswith("buffer_") or op.startswith("global_")
        s.ds = op.startswith("ds_")
        s.salu = op.startswith("s_")
        s.dpp = "_dpp" in op
        s.perml = op.startswith("v_permlane")
        s.rdlane = op.startswith("v_readlane") or op.startswith("v_readfirstlane")
        s.branch = op.startswith("s_branch") or op.startswith("s_cbranch") or op.startswith("s_setpc")
        R = [regs_of(o) for o in ops]
        U = lambda l: set().union(*l) if l else set()
        s.w = set(); s.r = set(); s.wide_store = set(); s.srcC = set(); s.srcAB = set()
        if s.mfma:
            s.w = R[0]; s.srcAB = R[1] | R[2]; s.srcC = R[3]; s.r = s.srcAB | s.srcC
            s.passes = 8 if "32x32" in op else 4
        elif s.valu:
            if s.perml and "swap" in op: s.w = R[0] | R[1]; s.r = R[0] | R[1]
            elif op.startswith("v_nop"): pass
            else:
                s.w = R[0]; s.r = U(R[1:])
                if op.startswith(("v_fmac","v_dot2c","v_pk_fmac","v_writelane")) or s.dpp or "_sdwa" in op: s.r |= R[0]
                if "_co_" in op: s.w |= R[1]
        elif s.vmem:
            lds = " lds" in t
            if "_load" in op and not lds: s.w = R[0]; s.r = U(R[1:])
            elif "_atomic" in op: s.r = U(R)
            else:
                s.r = U(R)
                if "x4" in op or "x3" in op:
                    s.wide_store = R[0] if op.startswith("buffer_") else R[1]
        elif s.ds:
            if op.startswith(("ds_read","ds_bpermute","ds_permute","ds_swizzle")) or "_rtn" in op: s.w = R[0]; s.r = U(R[1:])
            else: s.r = U(R)
        elif s.salu:
            if op.startswith(("s_cmp","s_waitcnt","s_nop","s_barrier","s_sleep","s_setprio","s_endpgm","s_branch","s_cbranch","s_bitcmp")): s.r = U(R)
            else:
                s.w = R[0] if R else set(); s.r = U(R[1:])
                if "saveexec" in op: s.w |= regs_of("exec")
        s.states = 1
        if op == "s_nop": s.states = int(ops[0], 0) + 1

def need(p, c):
    n = 0
    pv = {x for x in p.w if x[0] in "va"}; ps = {x for x in p.w if x[0] == "s"}
    if p.valu:
        if c.mfma and pv & c.r: n = max(n, 2)
        if c.valu and (c.dpp or c.perml) and pv & c.r: n = max(n, 2)
        if c.rdlane and pv & c.r: n = max(n, 1)
        if ps:
            if c.valu and ps & c.r: n = max(n, 4 if (c.rdlane or c.op.startswith("v_writelane")) else 2)
            if c.vmem and ps & c.r: n = max(n, 5)
        if p.trans and c.valu and not c.trans and pv & c.r: n = max(n, 1)
        if ("_sdwa" in p.op) and c.valu and pv & (c.r | c.w): n = max(n, 1)
        if p.op.startswith("v_dot") and (c.valu or c.mfma) and pv & (c.r | c.w) and c.op != p.op: n = max(n, 3)
    if p.mfma:
        big = {4: 8, 8: 12}[p.passes]
        if c.mfma:
            if p.w & c.srcAB: n = max(n, big)
            if p.w & c.srcC and not (p.w == c.srcC and p.passes == c.passes): n = max(n, big - 2)
            if p.w & c.w and not (p.w == c.w and p.w == c.srcC): n = max(n, big - 2)
        elif (c.valu or c.vmem or c.ds) and p.w & (c.r | c.w): n = max(n, big)
        if c.valu and p.srcC & c.w: n = max(n, {4: 3, 8: 7}[p.passes])
    if p.wide_store and p.wide_store & c.w: n = max(n, 2)
    if p.salu and ("s",124) in p.w and c.vmem and " lds" in c.text: n = max(n, 1)
    return n

def worst(p):
    if p.mfma: return {4: 8, 8: 12}[p.passes]
    if p.valu:
        if any(x[0] == "s" for x in p.w): return 5
        return 3 if p.op.startswith("v_dot") else 2
    if p.wide_store: return 2
    return 0

class Asm:
    def __init__(s):
        s.out = []; s.hist = []; s.nlab = 0; s.nops = 0
    def raw(s, t): s.out.append(t)
    def label(s, name): s.out.append(name + ":")
    def newlabel(s, p="L"):
        s.nlab += 1; return f"{p}_{s.nlab}"
    def _pad(s, n):
        while n > 0:
            k = min(n, 16)
            i = Ins(f"s_nop {k-1}"); s.out.append("    " + i.text); s.hist.append(i); n -= k; s.nops += 1
    def __call__(s, text, safe=False):
        for line in text.strip().split("\n"):
            line = line.strip()
            if not line or line.startswith(";"): continue
            if line.endswith(":"): s.label(line[:-1]); continue
            if line.startswith("."): s.raw(line); continue
            c = Ins(line)
            d = 0; pad = 0
            for p in reversed(s.hist[-24:]):
                req = need(p, c)
                if c.branch and not safe: req = max(req, worst(p) - 1)
                pad = max(pad, req - d)
                d += p.states
                if d >= 20: break
            s._pad(pad)
            s.out.append("    " + line); s.hist.append(c)
    def text(s): return "\n".join(s.out) + "\n"
```

```python
import sys, math
from asmlib import Asm, hexf, f2u

NAME = "adaLN_cond__gqa_block_cached__mixer_token_mlp__decode_kernel"
HDR = open("adaLN_cond__gqa_block_cached__mixer_token_mlp__decode.s.ref").read().split("; Override launch")[0] if len(sys.argv) > 99 else ""

P1P = 0x000000
SA  = 0x100000
QP  = SA + 0x000000
MP  = SA + 0x040000
H1  = SA + 0x080000
AP  = SA + 0x100000
MF  = SA + 0x120000
ML  = SA + 0x128000
FLG = 0x040000
EPO = 0x050000
STAMP = 0x8000000
F_TOK, F_Q, F_CNT, F_F, F_ALL, F_CLR, F_K, F_NEXT = 0, 4, 8, 12, 16, 20, 24, 32
L_H   = 0x100
L_Q   = 0x400
L_ST  = 0x1000
L_F   = 0x1200
L_RED = 0x1400
L_SLAB = 0x1800
SLAB = 4224
L_MOD = 0x9C00
L_S2  = 0xDC00
L_HL  = 0x10000
L_X2  = 0x11000
L_KB  = 0x12000
LDS_BYTES = 0x22000

KOFF = [0, 128, 2048, 2176]
LOG2E = 1.4426950408889634
SCALE = 128 ** -0.5
K0 = -2.0 * math.sqrt(2.0 / math.pi) * LOG2E
K1 = K0 * 0.044715

def vr(a, n=1): return f"v[{a}:{a+n-1}]" if n > 1 else f"v{a}"
def sr(a, n=1): return f"s[{a}:{a+n-1}]" if n > 1 else f"s{a}"

S_WG, S_WAVE, S_G8, S_C = 2, 3, 5, 6
S_T0, S_T1, S_T2 = 7, 8, 9
S_BUD = 10
S_SELLO, S_SELHI = 11, 12
S_KV = 13
S_LOG2E, S_SCALE = 14, 15
P_X, P_K, P_V, P_WQ, P_WO, P_W1, P_B1, P_W2, P_B2, P_C, P_WM, P_OUT, P_DBG, P_WS = 16,18,20,22,24,28,30,32,34,36,38,40,42,44
S_B2 = 46
S_STATE = 47
S_P1 = 4
S_CR = 27
S_EPO = 26
R_K, R_V, R_WS, R_T, R_U = 48, 52, 56, 60, 64
M_H, M_B = 68, 70
M0 = 72
S_ST = 88

class G:
    def __init__(s, stamps=False, nt="nt", depth=20):
        s.a = Asm(); s.stamps = stamps; s.nt = nt; s.nst = 0; s.D = depth
    def srd(s, r, p, size):
        s.a(f"s_mov_b32 s{r}, s{p}\ns_mov_b32 s{r+1}, s{p+1}\ns_mov_b32 s{r+2}, {size}\ns_mov_b32 s{r+3}, 0x20000")
    def stamp(s, i, grp=None):
        if s.stamps and (grp is None or grp == s.stamps):
            assert i < 7
            s.a(f"s_memrealtime s[{S_ST+2*i}:{S_ST+2*i+1}]")
    def rnd(s, d, x):
        s.a(f"v_cvt_pk_bf16_f32 v{d}, 0, v{x}")
    def lds_wait(s, addr, val, vt, sleep=2, pad=True):
        a = s.a; L = a.newlabel("LW"); D = a.newlabel("LWD")
        a(f"v_mov_b32 v{vt+1}, 0")
        a.label(L)
        a(f"ds_read_b32 v{vt}, v{vt+1} offset:{addr}")
        a("s_waitcnt lgkmcnt(0)")
        a(f"v_readfirstlane_b32 s{S_T0}, v{vt}")
        a(f"s_cmp_ge_u32 s{S_T0}, {val}")
        a(f"s_cbranch_scc1 {D}", safe=True)
        a(f"s_sleep {sleep}")
        a(f"s_sub_u32 s{S_BUD}, s{S_BUD}, 1")
        a(f"s_cbranch_scc0 {L}", safe=True)
        a(f"s_mov_b32 s{S_BUD}, 0")
        a.label(D)
        if pad: a("s_nop 4")
    def lds_set(s, addr, val, vt):
        a = s.a
        a(f"v_mov_b32 v{vt}, {val}\nv_mov_b32 v{vt+1}, 0")
        a(f"ds_write_b32 v{vt+1}, v{vt} offset:{addr}")
    def ticket(s, vt):
        a = s.a
        a(f"""
        v_mov_b32 v{vt}, 1
        v_mov_b32 v{vt+1}, 0
        s_mov_b64 exec, 1
        ds_add_rtn_u32 v{vt}, v{vt+1}, v{vt} offset:{F_NEXT}
        s_mov_b64 exec, -1
        s_waitcnt lgkmcnt(0)
        v_readfirstlane_b32 s{S_CR}, v{vt}
        s_lshl_b32 s{S_CR}, s{S_CR}, 2
        s_add_u32 s{S_CR}, s{S_CR}, {4*8-3}
        """)
    def credit(s, vt):
        s.lds_wait(F_TOK, f"s{S_CR}", vt, sleep=1, pad=False)
        s.a(f"s_add_u32 s{S_CR}, s{S_CR}, 1")
    def paced(s, loads, vt, ramp=True, start=0, skip_first=False):
        st = s.D // 4
        for i, l in enumerate(loads):
            k = start + i
            if ramp and k % st == 0 and k < 4 * st and not (skip_first and k == 0): s.credit(vt)
            if k >= s.D: s.a(f"s_waitcnt vmcnt({s.D-1})")
            l()
        if ramp:
            n = start + len(loads)
            for k in range(0, 4 * st, st):
                if k >= n: s.credit(vt)
    def release(s, vt):
        a = s.a; st = s.D // 4
        a(f"v_mov_b32 v{vt}, 1\nv_mov_b32 v{vt+1}, 0\ns_mov_b64 exec, 1")
        for i in range(4):
            if i: a(f"s_waitcnt vmcnt({s.D - st*i})")
            a(f"ds_add_u32 v{vt+1}, v{vt} offset:{F_TOK}")
        a("s_mov_b64 exec, -1")
    def umax(s, d, regs):
        a = s.a; regs = list(regs)
        if len(regs) == 1: a(f"v_mov_b32 v{d}, v{regs[0]}"); return
        if len(regs) == 2: a(f"v_max_u32 v{d}, v{regs[0]}, v{regs[1]}"); return
        a(f"v_max3_u32 v{d}, v{regs[0]}, v{regs[1]}, v{regs[2]}"); regs = regs[3:]
        while len(regs) >= 2:
            a(f"v_max3_u32 v{d}, v{d}, v{regs[0]}, v{regs[1]}"); regs = regs[2:]
        if regs: a(f"v_max_u32 v{d}, v{d}, v{regs[0]}")
    def poll_all(s, loads, regs, vt, sleep=4):
        a = s.a; L = a.newlabel("PA"); D = a.newlabel("PAD")
        a.label(L)
        for l in loads: a(l)
        a("s_waitcnt vmcnt(0)")
        s.umax(vt, regs)
        a(f"v_cmp_eq_u32 vcc, -1, v{vt}")
        a(f"s_cbranch_vccz {D}", safe=True)
        if sleep: a(f"s_sleep {sleep}")
        a(f"s_sub_u32 s{S_BUD}, s{S_BUD}, 1")
        a(f"s_cbranch_scc0 {L}", safe=True)
        a(f"s_mov_b32 s{S_BUD}, 0")
        a.label(D)
        a("s_nop 4")
    def poll_masked(s, loads, vt):
        a = s.a; L = a.newlabel("PM"); D = a.newlabel("PMD")
        n = len(loads); assert n <= 8
        for l, _ in loads: a(l)
        a.label(L)
        a("s_waitcnt vmcnt(0)")
        for i, (l, regs) in enumerate(loads):
            s.umax(vt + i, regs)
        for i in range(n):
            a(f"v_cmp_eq_u32 s[{M0+2*i}:{M0+2*i+1}], -1, v{vt+i}")
        a(f"s_or_b64 vcc, s[{M0}:{M0+1}], s[{M0+2}:{M0+3}]")
        for i in range(2, n):
            a(f"s_or_b64 vcc, vcc, s[{M0+2*i}:{M0+2*i+1}]")
        a(f"s_cbranch_scc0 {D}", safe=True)
        for i, (l, _) in enumerate(loads):
            K = a.newlabel("PK")
            a(f"s_mov_b64 exec, s[{M0+2*i}:{M0+2*i+1}]")
            a(f"s_cbranch_execz {K}", safe=True)
            a(l)
            a.label(K)
        a("s_mov_b64 exec, -1")
        a(f"s_sub_u32 s{S_BUD}, s{S_BUD}, 1")
        a(f"s_cbranch_scc0 {L}", safe=True)
        a(f"s_mov_b32 s{S_BUD}, 0")
        a("s_waitcnt vmcnt(0)")
        a.label(D)
    def red_row(s, op, x, steps):
        for k in steps:
            s.a(f"v_{op}_f32_dpp v{x}, v{x}, v{x} row_ror:{k} row_mask:0xf bank_mask:0xf")
    def red_16(s, op, x, t):
        s.a(f"v_mov_b32 v{t}, v{x}\nv_permlane16_swap_b32 v{x}, v{t}\nv_{op}_f32 v{x}, v{x}, v{t}")
    def red_32(s, op, x, t):
        s.a(f"v_mov_b32 v{t}, v{x}\nv_permlane32_swap_b32 v{x}, v{t}\nv_{op}_f32 v{x}, v{x}, v{t}")

    def warm_code(s, vd):
        a = s.a; L = a.newlabel("PC")
        a(f"s_getpc_b64 s[{M0}:{M0+1}]")
        a.label(L)
        a(f"s_sub_u32 s{M0}, s{M0}, {L}-{NAME}")
        a(f"s_subb_u32 s{M0+1}, s{M0+1}, 0")
        a(f"v_lshlrev_b32 v{vd}, 6, v0")
        a(f"v_min_u32 v{vd}, L_end-{NAME}, v{vd}")
        a(f"global_load_dword v{vd}, v{vd}, s[{M0}:{M0+1}]")

    def silu_operand(s, base, t):
        a = s.a
        for i in range(16):
            r = base + i
            a(f"v_lshlrev_b32 v{t}, 16, v{r}")
            a(f"v_and_b32 v{t+1}, 0xffff0000, v{r}")
            a(f"v_mul_f32 v{t+2}, s{S_LOG2E}, v{t}")
            a(f"v_mul_f32 v{t+3}, s{S_LOG2E}, v{t+1}")
            a(f"v_exp_f32 v{t+2}, -v{t+2}")
            a(f"v_exp_f32 v{t+3}, -v{t+3}")
            a(f"v_add_f32 v{t+2}, 1.0, v{t+2}")
            a(f"v_add_f32 v{t+3}, 1.0, v{t+3}")
            a(f"v_rcp_f32 v{t+2}, v{t+2}")
            a(f"v_rcp_f32 v{t+3}, v{t+3}")
            a(f"v_mul_f32 v{t}, v{t}, v{t+2}")
            a(f"v_mul_f32 v{t+1}, v{t+1}, v{t+3}")
            a(f"v_cvt_pk_bf16_f32 v{r}, v{t}, v{t+1}")
    def load_c(s, base, vt):
        a = s.a
        s.srd(R_U, P_C, 4096)
        a(f"v_and_b32 v{vt}, 1, v3\nv_lshlrev_b32 v{vt}, 11, v{vt}\nv_lshl_add_u32 v{vt}, v2, 4, v{vt}")
        a(f"s_lshl_b32 s{S_T0}, s{S_G8}, 8")
        for t in range(4):
            a(f"buffer_load_dwordx4 {vr(base+4*t,4)}, v{vt}, {sr(R_U,4)}, s{S_T0} offen offset:{64*t}")
    def load_tile(s, base, w, voff, srd, sbase, stride, pace=None, vt=None):
        a = s.a
        sfx = {2: "x2", 4: "x4"}[w]
        for t in range(1, 4): a(f"v_add_u32 v{voff+t}, {32*t*stride}, v{voff}")
        for j in range(8): a(f"s_add_u32 s{M0+j}, s{sbase}, {j*stride}")
        L = []
        for t in range(4):
            for j in range(8):
                k = 8 * t + j
                L.append(lambda k=k, t=t, j=j: a(f"buffer_load_dword{sfx} {vr(base+w*k,w)}, v{voff+t}, {sr(srd,4)}, s{M0+j} offen {s.nt}"))
        if pace is None:
            for l in L: l()
        else:
            s.paced(L, vt, ramp=(pace == "ramp"))
            s.release(vt)
    def perm_op(s, dst, ld, e):
        sel = S_SELHI if e & 1 else S_SELLO
        for jj in range(4):
            s.a(f"v_perm_b32 v{dst+jj}, v{ld[2*jj+1]+(e>>1)}, v{ld[2*jj]+(e>>1)}, s{sel}")
    def gemv(s, tile, w, aop, acc, tmp, waits=None):
        a = s.a; ne = 2 * w; k = 0
        for t in range(4):
            if waits is not None: a(f"s_waitcnt vmcnt({waits[t]})")
            ld = [tile + w * (8 * t + j) for j in range(8)]
            for e in range(ne):
                d = tmp + 4 * (k & 3); k += 1
                s.perm_op(d, ld, e)
                c = "0" if t == 0 else vr(acc + 4 * e, 4)
                a(f"v_mfma_f32_16x16x32_bf16 {vr(acc+4*e,4)}, {vr(aop+4*t,4)}, {vr(d,4)}, {c}")
    def sel128(s, acc, out, t):
        a = s.a
        for q in range(4):
            a(f"v_cndmask_b32 v{t}, v{acc+4*q}, v{acc+4*(4+q)}, s[{M_H}:{M_H+1}]")
            a(f"v_cndmask_b32 v{t+1}, v{acc+4*q+1}, v{acc+4*(4+q)+1}, s[{M_H}:{M_H+1}]")
            a(f"v_cndmask_b32 v{out+q}, v{t}, v{t+1}, s[{M_B}:{M_B+1}]")
            a(f"v_min_u32 v{out+q}, -2, v{out+q}")

    def prologue(s):
        a = s.a
        a(f"""
        s_cmp_ge_u32 s2, 256
        s_cbranch_scc1 L_end
        s_load_dwordx16 s[16:31], s[0:1], 0
        s_load_dwordx8 s[32:39], s[0:1], 64
        s_load_dwordx4 s[40:43], s[0:1], 96
        s_load_dwordx2 s[44:45], s[0:1], 112
        """)
        s.warm_code(47)
        s.stamp(0)
        a(f"""
        v_lshrrev_b32 v4, 6, v0
        v_and_b32 v1, 63, v0
        v_readfirstlane_b32 s{S_WAVE}, v4
        v_lshrrev_b32 v2, 4, v1
        v_and_b32 v3, 15, v1
        v_mov_b32 v4, 0
        v_lshlrev_b32 v5, 2, v1
        ds_write_b32 v5, v4
        s_and_b32 s{S_G8}, s2, 7
        s_lshr_b32 s{S_C}, s2, 3
        s_mov_b32 s{S_BUD}, 400000
        s_mov_b32 s{S_SELLO}, 0x05040100
        s_mov_b32 s{S_SELHI}, 0x07060302
        s_mov_b32 s{S_LOG2E}, {hexf(LOG2E)}
        s_mov_b32 s{S_SCALE}, {hexf(SCALE)}
        s_mov_b32 s{M_H}, 0xffff0000
        s_mov_b32 s{M_H+1}, 0xffff0000
        s_mov_b32 s{M_B}, 0
        s_mov_b32 s{M_B+1}, -1
        s_lshl_b32 s{S_KV}, s{S_G8}, 23
        s_lshl_b32 s{S_T0}, s{S_C}, 18
        s_add_u32 s{S_KV}, s{S_KV}, s{S_T0}
        s_lshl_b32 s{S_T0}, s{S_WAVE}, 15
        s_add_u32 s{S_KV}, s{S_KV}, s{S_T0}
        s_waitcnt lgkmcnt(0)
        """)
        s.srd(R_K, P_K, 0x4000000); s.srd(R_V, P_V, 0x4000000); s.srd(R_WS, P_WS, 0x10000000)
        s.srd(R_T, P_WM, 12582912); s.srd(R_U, P_C, 4096)
        a(f"""
        s_load_dword s{S_B2}, s[{P_B2}:{P_B2+1}], 0
        s_load_dword s{S_EPO}, s[{P_WS}:{P_WS+1}], {EPO}
        s_lshr_b32 s{S_P1}, s{S_C}, 1
        s_lshl_b32 s{S_P1}, s{S_P1}, 3
        s_add_u32 s{S_P1}, s{S_P1}, s{S_G8}
        s_lshl_b32 s{S_P1}, s{S_P1}, 10
        s_and_b32 s{S_T2}, s{S_C}, 1
        s_lshl_b32 s{S_T2}, s{S_T2}, 8
        s_add_u32 s{S_P1}, s{S_P1}, s{S_T2}
        s_barrier
        s_cmp_eq_u32 s{S_WAVE}, 1
        s_cbranch_scc1 L_w1
        s_cmp_eq_u32 s{S_WAVE}, 7
        s_cbranch_scc1 L_w7
        s_cmp_gt_u32 s{S_WAVE}, 1
        s_cbranch_scc1 L_stream
        """)

    def w0(s):
        a = s.a
        a.label("L_w0")
        a("s_setprio 3")
        s.load_c(4, 99)
        a(f"""
        v_mul_u32_u24 v100, {8*12288}, v2
        v_lshl_add_u32 v100, v3, 3, v100
        s_mul_i32 s{S_T2}, s{S_G8}, {128*12288}
        s_lshl_b32 s{S_T0}, s{S_C}, 7
        s_add_u32 s{S_T0}, s{S_T2}, s{S_T0}
        """)
        s.load_tile(20, 2, 100, R_T, S_T0, 12288)
        s.stamp(1, "w0")
        a("s_waitcnt vmcnt(32)")
        s.silu_operand(4, 104)
        s.gemv(20, 2, 4, 84, 104, waits=[24, 16, 8, 0])
        for e in range(4):
            a(f"v_cndmask_b32 v{120+e}, v{84+4*e}, v{84+4*e+1}, s[{M_H}:{M_H+1}]")
        for e in range(4):
            a(f"v_min_u32 v{120+e}, -2, v{120+e}")
        s.lds_wait(F_CLR, 1, 100)
        a(f"""
        v_lshlrev_b32 v125, 9, v2
        v_lshl_add_u32 v125, v3, 4, v125
        s_mov_b32 exec_hi, 0
        buffer_store_dwordx4 v[120:123], v125, {sr(R_WS,4)}, s{S_P1} offen sc1
        s_mov_b32 exec_hi, -1
        """)
        s.stamp(1, "pro"); s.stamp(3, "w0")
        a(f"s_setprio 0\ns_mov_b32 s{S_CR}, {4*2-3}")
        a(f"""
        v_mul_u32_u24 v116, {8*12288}, v2
        v_lshl_add_u32 v116, v3, 4, v116
        s_lshl_b32 s{S_T0}, s{S_C}, 8
        s_add_u32 s{S_T0}, s{S_T2}, s{S_T0}
        s_add_u32 s{S_T0}, s{S_T0}, 4096
        """)
        s.load_tile(128, 4, 116, R_T, S_T0, 12288, pace="ramp", vt=100)
        s.stamp(4, "w0")
        s.gemv(128, 4, 4, 20, 104, waits=[24, 16, 8, 0])
        s.sel128(20, 56, 60)
        a(f"""
        v_lshrrev_b32 v62, 5, v1
        v_lshlrev_b32 v62, 9, v62
        v_and_b32 v63, 1, v2
        v_lshl_add_u32 v62, v63, 4, v62
        v_lshl_add_u32 v62, v3, 5, v62
        """)
        s.stamp(2, "pro"); s.stamp(5, "w0")
        s.lds_wait(F_ALL, 1, 64)
        a(f"""
        s_lshl_b32 s{S_T0}, s2, 10
        s_add_u32 s{S_T0}, s{S_T0}, {MP}
        buffer_store_dwordx4 v[56:59], v62, {sr(R_WS,4)}, s{S_T0} offen sc1
        """)
        s.lds_set(F_CLR, 2, 64)
        s.stamp(3, "pro"); s.stamp(6, "w0")
        a("s_branch L_helper")

    def ln_scalars(s, mean, var):
        a = s.a
        s.rnd(mean, mean); s.rnd(var, var)
        a(f"v_add_f32 v{var}, {hexf(1e-5)}, v{var}"); s.rnd(var, var)
        a(f"v_sqrt_f32 v{var}, v{var}"); s.rnd(var, var)
        a(f"v_rcp_f32 v{var}, v{var}")

    def w1(s):
        a = s.a
        a.label("L_w1")
        a("s_setprio 3")
        s.srd(R_U, P_X, 4096)
        s.srd(R_T, P_WQ, 8388608)
        a(f"""
        v_lshlrev_b32 v125, 6, v1
        v_lshrrev_b32 v126, 5, v1
        v_lshlrev_b32 v126, 11, v126
        v_and_b32 v127, 31, v1
        v_lshl_add_u32 v126, v127, 3, v126
        s_lshl_b32 s{S_T0}, s{S_G8}, 8
        """)
        for i in range(4):
            a(f"buffer_load_dwordx4 {vr(84+4*i,4)}, v125, {sr(R_U,4)}, 0 offen offset:{16*i}")
        a(f"buffer_load_dwordx2 v[100:101], v126, {sr(R_U,4)}, s{S_T0} offen")
        a(f"""
        v_lshlrev_b32 v120, 16, v2
        v_lshl_add_u32 v120, v3, 4, v120
        s_lshl_b32 s{S_T2}, s{S_G8}, 20
        s_lshl_b32 s{S_T0}, s{S_C}, 8
        s_add_u32 s{S_T2}, s{S_T2}, s{S_T0}
        """)
        s.load_tile(128, 4, 120, R_T, S_T2, 8192, pace="first", vt=102)
        s.stamp(1, "w0")
        a("s_waitcnt vmcnt(32)")
        for i in range(16):
            a(f"v_lshlrev_b32 v{20+2*i}, 16, v{84+i}")
            a(f"v_and_b32 v{21+2*i}, 0xffff0000, v{84+i}")
        a("v_add_f32 v104, v20, v21")
        for i in range(2, 32): a(f"v_add_f32 v104, v104, v{20+i}")
        s.red_row("add", 104, [8, 4, 2, 1]); s.red_16("add", 104, 105)
        a(f"v_mul_f32 v104, {hexf(1/1024)}, v104")
        a("v_mov_b32 v106, 0")
        for i in range(32):
            a(f"v_sub_f32 v105, v{20+i}, v104\nv_fmac_f32 v106, v105, v105")
        s.red_row("add", 106, [8, 4, 2, 1]); s.red_16("add", 106, 105)
        a(f"v_mul_f32 v106, {hexf(1/1024)}, v106")
        s.ln_scalars(104, 106)
        a(f"""
        v_lshlrev_b32 v108, 16, v100
        v_and_b32 v109, 0xffff0000, v100
        v_lshlrev_b32 v110, 16, v101
        v_and_b32 v111, 0xffff0000, v101
        """)
        for q in range(4):
            a(f"v_sub_f32 v{108+q}, v{108+q}, v104"); s.rnd(108+q, 108+q)
            a(f"v_mul_f32 v{108+q}, v{108+q}, v106"); s.rnd(108+q, 108+q)
        a("v_lshlrev_b32 v124, 4, v1")
        s.stamp(2, "w0")
        s.lds_wait(F_ALL, 1, 112)
        s.stamp(1, "pro"); s.stamp(3, "w0")
        a(f"s_lshl_b32 s{S_T2}, s{S_G8}, 13")
        loads = []
        for wh in range(2):
            for hi in range(2):
                a(f"s_add_u32 s{M0+2*wh+hi}, s{S_T2}, {P1P + wh*65536 + hi*4096}")
                for lo in range(4):
                    k = wh * 8 + hi * 4 + lo
                    loads.append(f"buffer_load_dwordx4 {vr(20+4*k,4)}, v124, {sr(R_WS,4)}, s{M0+2*wh+hi} offen offset:{1024*lo} sc1")
        s.poll_all(loads, range(20, 84), 112, sleep=0)
        s.stamp(4, "w0")
        for wh in range(2):
            b0 = 20 + 32 * wh
            for k in range(1, 8):
                for q in range(4): a(f"v_add_f32 v{b0+q}, v{b0+q}, v{b0+4*k+q}")
        for q in range(4):
            s.rnd(20+q, 20+q); s.rnd(52+q, 52+q)
            a(f"v_add_f32 v{52+q}, 1.0, v{52+q}"); s.rnd(52+q, 52+q)
            a(f"v_mul_f32 v{108+q}, v{108+q}, v{52+q}"); s.rnd(108+q, 108+q)
            a(f"v_add_f32 v{108+q}, v{108+q}, v{20+q}")
        a(f"""
        v_cvt_pk_bf16_f32 v112, v108, v109
        v_cvt_pk_bf16_f32 v113, v110, v111
        v_lshlrev_b32 v114, 3, v1
        ds_write_b64 v114, v[112:113] offset:{L_H}
        v_and_b32 v114, 1, v3
        v_lshlrev_b32 v114, 8, v114
        v_lshl_add_u32 v114, v2, 4, v114
        """)
        for t in range(4):
            a(f"ds_read_b128 {vr(4+4*t,4)}, v114 offset:{L_H + 64*t}")
        a("s_waitcnt lgkmcnt(0)")
        s.gemv(128, 4, 4, 20, 104)
        s.sel128(20, 56, 60)
        a(f"""
        v_lshrrev_b32 v62, 5, v1
        v_lshlrev_b32 v62, 17, v62
        v_and_b32 v63, 1, v2
        v_lshl_add_u32 v62, v63, 4, v62
        v_lshl_add_u32 v62, v3, 5, v62
        s_lshl_b32 s{S_T0}, s2, 9
        s_add_u32 s{S_T0}, s{S_T0}, {QP}
        buffer_store_dwordx4 v[56:59], v62, {sr(R_WS,4)}, s{S_T0} offen sc1
        """)
        s.stamp(2, "pro"); s.stamp(5, "w0")
        a(f"""
        s_lshl_b32 s{S_T2}, s{S_G8}, 15
        v_lshrrev_b32 v64, 5, v1
        v_lshlrev_b32 v67, 12, v64
        v_and_b32 v65, 31, v1
        v_lshl_add_u32 v67, v65, 4, v67
        v_mul_u32_u24 v68, 272, v64
        v_lshl_add_u32 v68, v65, 3, v68
        s_waitcnt vmcnt(0)
        """)
        loads = []
        for hp in range(4):
            a(f"s_add_u32 s{M0+hp}, s{S_T2}, {QP + hp*8192}")
            for rho in range(8):
                loads.append(f"buffer_load_dwordx4 {vr(128+32*hp+4*rho,4)}, v67, {sr(R_WS,4)}, s{M0+hp} offen offset:{512*rho} sc1")
        s.poll_all(loads, range(128, 256), 66, sleep=0)
        for hp in range(4):
            b0 = 128 + 32 * hp
            for k in range(1, 8):
                for q in range(4): a(f"v_add_f32 v{b0+q}, v{b0+q}, v{b0+4*k+q}")
            a(f"v_cvt_pk_bf16_f32 v{b0+4}, v{b0}, v{b0+1}\nv_cvt_pk_bf16_f32 v{b0+5}, v{b0+2}, v{b0+3}")
            a(f"ds_write_b64 v68, {vr(b0+4,2)} offset:{L_Q + 544*hp}")
        s.lds_set(F_Q, 1, 64)
        a("s_waitcnt lgkmcnt(0)")
        s.stamp(3, "pro"); s.stamp(6, "w0")
        a("s_setprio 0\ns_branch L_helper")

    def w7(s):
        a = s.a
        a.label("L_w7")
        assert P1P == 0
        a(f"""
        v_mov_b32 v120, -1
        v_mov_b32 v121, -1
        v_mov_b32 v122, -1
        v_mov_b32 v123, -1
        v_lshlrev_b32 v124, 4, v1
        s_mul_i32 s{S_T0}, s2, 5120
        s_add_u32 s{S_T0}, s{S_T0}, {SA}
        s_add_u32 s{S_T1}, s{S_T0}, 4096
        v_lshlrev_b32 v125, 9, v2
        v_lshl_add_u32 v125, v3, 4, v125
        """)
        for i in range(4):
            a(f"buffer_store_dwordx4 v[120:123], v124, {sr(R_WS,4)}, s{S_T0} offen offset:{1024*i} sc1")
        a(f"buffer_store_dwordx4 v[120:123], v124, {sr(R_WS,4)}, s{S_T1} offen sc1")
        a(f"""
        s_mov_b32 exec_hi, 0
        buffer_store_dwordx4 v[120:123], v125, {sr(R_WS,4)}, s{S_P1} offen sc1
        s_mov_b32 exec_hi, -1
        s_waitcnt lgkmcnt(0)
        s_mul_i32 s{S_T2}, s{S_EPO}, 0x9e3779b1
        s_add_u32 s{S_T2}, s{S_T2}, 0x7f4a7c15
        v_mov_b32 v126, s{S_T2}
        v_mov_b32 v127, 0
        s_lshl_b32 s{S_T0}, s2, 2
        s_add_u32 s{S_T0}, s{S_T0}, {FLG}
        s_mov_b32 s{S_T1}, {FLG}
        s_mov_b64 exec, 1
        s_waitcnt vmcnt(0)
        buffer_store_dword v126, v127, {sr(R_WS,4)}, s{S_T0} offen sc1
        s_mov_b64 exec, -1
        """)
        s.lds_set(F_CLR, 1, 100)
        s.stamp(1, "w0")
        L = a.newlabel("FL"); D = a.newlabel("FLD")
        a("s_waitcnt vmcnt(0)\ns_sleep 24")
        a.label(L)
        a(f"buffer_load_dwordx4 v[104:107], v124, {sr(R_WS,4)}, s{S_T1} offen sc1")
        a("s_waitcnt vmcnt(0)")
        for i in range(4): a(f"v_xor_b32 v{104+i}, v{104+i}, v126")
        a(f"v_or3_b32 v104, v104, v105, v106\nv_or_b32 v104, v104, v107\nv_cmp_ne_u32 vcc, 0, v104")
        a(f"s_cbranch_vccz {D}", safe=True)
        a(f"s_sleep 8\ns_sub_u32 s{S_BUD}, s{S_BUD}, 1")
        a(f"s_cbranch_scc0 {L}", safe=True)
        a(f"s_mov_b32 s{S_BUD}, 0")
        a.label(D)
        s.lds_set(F_ALL, 1, 100)
        s.stamp(2, "w0")
        a("s_branch L_stream")

    def vload(s, i, reg):
        u, j = i >> 3, i & 7
        if (j & 3) == 0: s.a(f"s_add_u32 s{S_T1}, s{S_KV}, {(32 * u + 16 * (j >> 2)) * 256}")
        s.a(f"buffer_load_dwordx4 {vr(reg,4)}, v5, {sr(R_V,4)}, s{S_T1} offen offset:{(8*((j>>1)&1) + (j&1))*256} {s.nt}")

    def stream(s):
        a = s.a
        VREG = [48 + 4 * i for i in range(20)] + [160 + 4 * i for i in range(12)]
        SREG = [16, 20] + [128 + 4 * i for i in range(6)]
        Q, WO, O, TMP = 24, 208, 224, 24
        RAW = list(range(40, 48)) + list(range(152, 156)); XF = 156
        s.VREG, s.SREG, s.WO, s.O, s.RAW, s.XF = VREG, SREG, WO, O, RAW, XF
        addr = f"""
        v_lshrrev_b32 v4, 1, v3
        v_lshlrev_b32 v4, 8, v4
        v_lshl_add_u32 v4, v2, 5, v4
        v_and_b32 v5, 1, v3
        v_lshl_add_u32 v4, v5, 4, v4
        v_lshlrev_b32 v5, 9, v2
        v_lshl_add_u32 v5, v3, 4, v5
        s_mov_b32 s{S_STATE}, 0
        """
        a.label("L_stream")
        a(addr)
        a(f"s_lshl_b32 s{S_CR}, s{S_WAVE}, 2\ns_sub_u32 s{S_CR}, s{S_CR}, 3\ns_cmp_eq_u32 s{S_WAVE}, 2\ns_cselect_b32 s{S_CR}, 1, s{S_CR}")
        def kload(t, k):
            if k == 0: a(f"s_add_u32 s{S_T1}, s{S_KV}, {4096*t}")
            a(f"buffer_load_dwordx4 {vr(128+16*t+4*k,4)}, v4, {sr(R_K,4)}, s{S_T1} offen offset:{KOFF[k]} {s.nt}")
        def kdma(t, k):
            if k == 0: a(f"s_add_u32 s{S_T1}, s{S_KV}, {4096*t - 65536}")
            a(f"s_add_u32 m0, s{S_T2}, {1024*(4*t+k) - KOFF[k]}")
            a(f"buffer_load_dwordx4 v4, {sr(R_K,4)}, s{S_T1} offen offset:{KOFF[k]} {s.nt} lds")
        s.credit(6)
        s.stamp(1, "str")
        s.paced([lambda t=t, k=k: kload(t, k) for t in range(8) for k in range(4)], 6, skip_first=True)
        a(f"s_cmp_gt_u32 s{S_WAVE}, 3\ns_cbranch_scc1 L_nodma")
        a(f"s_lshl_b32 s{S_T2}, s{S_WAVE}, 15\ns_add_u32 s{S_T2}, s{S_T2}, {L_KB - 65536}")
        s.paced([lambda t=t, k=k: kdma(t, k) for t in range(8) for k in range(4)], 6, start=32)
        a.label("L_nodma")
        s.stamp(2, "str")
        s.release(6)
        a(f"s_cmp_gt_u32 s{S_WAVE}, 3\ns_cbranch_scc1 L_vtick")
        s.lds_wait(F_Q, 1, 6)
        a(f"s_mov_b32 s{S_STATE}, 1\ns_waitcnt vmcnt(0)\ns_branch L_qk")
        a.label("L_helper")
        a(addr)
        a.label("L_vtick")
        s.ticket(6)
        a(f"""
        s_lshl_b32 s{S_T0}, s{S_WAVE}, 2
        s_add_u32 s{S_T0}, s{S_T0}, {F_K}
        s_cmp_lt_u32 s{S_WAVE}, 2
        s_cselect_b32 s{S_T0}, s{S_T0}, {F_Q}
        v_mov_b32 v9, s{S_T0}
        """)
        a.label("L_waitv")
        a(f"""
        v_mov_b32 v8, 0
        ds_read_b32 v6, v8 offset:{F_TOK}
        ds_read_b32 v7, v9
        s_waitcnt lgkmcnt(0)
        v_readfirstlane_b32 s{S_T0}, v6
        v_readfirstlane_b32 s{S_T1}, v7
        s_cmp_ge_u32 s{S_T0}, s{S_CR}
        s_cbranch_scc1 L_issuev
        s_cmp_gt_u32 s{S_T1}, s{S_STATE}
        s_cbranch_scc0 L_waitv2
        s_mov_b32 s{S_STATE}, 1
        s_waitcnt vmcnt(0)
        s_branch L_hk
        """)
        a.label("L_waitv2")
        a(f"""
        s_sleep 1
        s_sub_u32 s{S_BUD}, s{S_BUD}, 1
        s_cbranch_scc0 L_waitv
        s_mov_b32 s{S_BUD}, 0
        """)
        a.label("L_issuev")
        a(f"s_add_u32 s{S_CR}, s{S_CR}, 1")
        s.stamp(3, "str")
        s.paced([lambda i=i: s.vload(i, VREG[i]) for i in range(20)], 6, skip_first=True)
        s.stamp(4, "str")
        a(f"s_cmp_eq_u32 s{S_STATE}, 1\ns_cbranch_scc0 L_part")
        s.paced([lambda i=i: s.vload(i, VREG[i]) for i in range(20, 32)], 6, start=20, ramp=False)
        a("s_branch L_late2")
        a.label("L_part")
        s.release(6)
        W = a.newlabel("HK")
        a.label(W)
        a(f"""
        ds_read_b32 v6, v9
        s_waitcnt lgkmcnt(0)
        v_readfirstlane_b32 s{S_T0}, v6
        s_cmp_lg_u32 s{S_T0}, 0
        s_cbranch_scc1 L_hk
        s_sleep 2
        s_sub_u32 s{S_BUD}, s{S_BUD}, 1
        s_cbranch_scc0 {W}
        s_mov_b32 s{S_BUD}, 0
        """)
        a.label("L_hk")
        a(f"s_cmp_gt_u32 s{S_WAVE}, 1\ns_cbranch_scc1 L_qk")
        a(f"s_lshl_b32 s{S_T0}, s{S_WAVE}, 15\ns_add_u32 s{S_T0}, s{S_T0}, {L_KB}\nv_lshl_add_u32 v7, v1, 4, s{S_T0}")
        for i in range(32):
            a(f"ds_read_b128 {vr(128+4*i,4)}, v7 offset:{1024*i}")
            if i % 8 == 7: a("s_waitcnt lgkmcnt(0)")
        a.label("L_qk")
        a(f"s_sub_u32 s{S_T0}, s{S_WAVE}, 2\ns_cmp_gt_u32 s{S_T0}, 1\ns_cbranch_scc1 L_qk2")
        a(f"s_lshl_b32 s{S_T0}, s{S_T0}, 2\nv_mov_b32 v7, s{S_T0}\nv_mov_b32 v6, 1\nds_write_b32 v7, v6 offset:{F_K}")
        a.label("L_qk2")
        a(f"""
        v_and_b32 v6, 7, v3
        v_mul_u32_u24 v7, 272, v6
        v_lshl_add_u32 v7, v2, 5, v7
        v_lshrrev_b32 v8, 3, v3
        v_lshl_add_u32 v7, v8, 4, v7
        """)
        for k in range(2):
            a(f"ds_read_b128 {vr(Q+4*k,4)}, v7 offset:{L_Q + 128*k}")
        a("s_waitcnt lgkmcnt(0)")
        def fold(t):
            acc = 32 + 8 * (t & 1)
            for x in range(2):
                for h in range(2):
                    a(f"v_add_f32_dpp v{SREG[t]+2*x+h}, v{acc+4*x+2*h+1}, v{acc+4*x+2*h} row_ror:8 row_mask:0xf bank_mask:0xf")
        for t in range(8):
            acc = 32 + 8 * (t & 1)
            for hh in range(2):
                for x in range(2):
                    c = "0" if hh == 0 else vr(acc+4*x, 4)
                    a(f"v_mfma_f32_16x16x32_bf16 {vr(acc+4*x,4)}, {vr(128+16*t+8*x+4*hh,4)}, {vr(Q+4*hh,4)}, {c}")
            if t: fold(t - 1)
        fold(7)
        allS = [SREG[t] + r for t in range(8) for r in range(4)]
        for x in allS: s.rnd(x, x)
        for x in allS: a(f"v_mul_f32 v{x}, s{S_SCALE}, v{x}")
        for x in allS: s.rnd(x, x)
        a(f"v_max3_f32 v12, v{allS[0]}, v{allS[1]}, v{allS[2]}")
        for i in range(3, 31, 2): a(f"v_max3_f32 v12, v12, v{allS[i]}, v{allS[i+1]}")
        a(f"v_max_f32 v12, v12, v{allS[31]}")
        s.red_16("max", 12, 13); s.red_32("max", 12, 13)
        a(f"v_mul_f32 v14, s{S_LOG2E}, v12")
        for x in allS: a(f"v_fma_f32 v{x}, v{x}, s{S_LOG2E}, -v14")
        for x in allS: a(f"v_exp_f32 v{x}, v{x}")
        a(f"v_add_f32 v13, v{allS[0]}, v{allS[1]}")
        for x in allS[2:]: a(f"v_add_f32 v13, v13, v{x}")
        s.red_16("add", 13, 14); s.red_32("add", 13, 14)
        a(f"""
        s_lshl_b32 s{S_T0}, s{S_WAVE}, 6
        v_lshl_add_u32 v14, v1, 3, s{S_T0}
        v_mov_b32 v15, 1
        v_mov_b32 v7, 0
        s_mov_b64 exec, 0xff
        ds_write_b64 v14, v[12:13] offset:{L_ST}
        s_mov_b64 exec, 1
        ds_add_u32 v7, v15 offset:{F_CNT}
        s_mov_b64 exec, -1
        """)
        s.stamp(4, "pro")
        s.srd(R_T, P_WO, 8388608)
        a(f"""
        v_lshlrev_b32 v8, 12, v2
        v_lshl_add_u32 v8, v3, 3, v8
        s_lshl_b32 s{S_T0}, s{S_G8}, 1
        s_and_b32 s{S_T1}, s{S_C}, 1
        s_add_u32 s{S_T0}, s{S_T0}, s{S_T1}
        s_lshl_b32 s{S_T0}, s{S_T0}, 3
        s_add_u32 s{S_T0}, s{S_T0}, s{S_WAVE}
        s_lshl_b32 s{S_T2}, s{S_T0}, 16
        s_lshr_b32 s{S_T1}, s2, 4
        s_lshl_b32 s{S_T1}, s{S_T1}, 7
        s_add_u32 s{S_T2}, s{S_T2}, s{S_T1}
        """)
        for j in range(8):
            a(f"s_add_u32 s{S_T1}, s{S_T2}, {8*(j&3)*2048}")
            a(f"buffer_load_dwordx2 {vr(WO+2*j,2)}, v8, {sr(R_T,4)}, s{S_T1} offen offset:{(j>>2)*2048} {s.nt}")
        a("v_lshlrev_b32 v13, 2, v0\nv_lshlrev_b32 v10, 1, v0")
        for ai, p in enumerate([P_W1, P_B1, P_W2]):
            s.srd(R_U, p, 7168)
            a(f"s_movk_i32 s{S_T0}, 0x1000")
            a(f"buffer_load_dword v{RAW[4*ai]}, v13, {sr(R_U,4)}, 0 offen")
            a(f"buffer_load_dword v{RAW[4*ai+1]}, v13, {sr(R_U,4)}, 0 offen offset:2048")
            a(f"buffer_load_dword v{RAW[4*ai+2]}, v13, {sr(R_U,4)}, s{S_T0} offen")
            a(f"buffer_load_ushort v{RAW[4*ai+3]}, v10, {sr(R_U,4)}, s{S_T0} offen offset:2048")
        s.srd(R_U, P_X, 4096)
        a(f"""
        v_and_b32 v11, 31, v1
        v_lshlrev_b32 v11, 2, v11
        v_lshrrev_b32 v12, 5, v1
        v_lshl_add_u32 v11, v12, 1, v11
        s_lshl_b32 s{S_T0}, s{S_WAVE}, 7
        v_add_u32 v11, s{S_T0}, v11
        v_lshlrev_b32 v12, 1, v11
        s_and_b32 s{S_T0}, s2, 1
        s_lshl_b32 s{S_T0}, s{S_T0}, 11
        buffer_load_dword v{XF}, v12, {sr(R_U,4)}, s{S_T0} offen
        """)
        s.warm_code(157)
        a(f"s_cmp_eq_u32 s{S_WAVE}, 2\ns_cbranch_scc1 L_w2\ns_cmp_eq_u32 s{S_WAVE}, 3\ns_cbranch_scc1 L_w3")
        a(f"s_cmp_eq_u32 s{S_STATE}, 1\ns_cbranch_scc1 L_waitv")
        s.ticket(6)
        s.paced([lambda i=i: s.vload(i, VREG[i]) for i in range(20, 32)], 6)
        a.label("L_late2")
        s.release(6)
        a("v_and_b32 v6, 7, v3")
        s.stamp(5, "pro"); s.stamp(5, "str")
        a.label("L_pv")
        s.lds_wait(F_F, 1, 12)
        a(f"""
        s_lshl_b32 s{S_T0}, s{S_WAVE}, 5
        v_lshl_add_u32 v14, v6, 2, s{S_T0}
        ds_read_b32 v12, v14 offset:{L_F}
        s_waitcnt lgkmcnt(0)
        """)
        for x in allS: a(f"v_mul_f32 v{x}, v{x}, v12")
        for u in range(4):
            A_, B_ = SREG[2*u], SREG[2*u+1]
            a(f"v_cvt_pk_bf16_f32 v{A_}, v{A_}, v{A_+1}\nv_cvt_pk_bf16_f32 v{A_+1}, v{A_+2}, v{A_+3}")
            a(f"v_cvt_pk_bf16_f32 v{A_+2}, v{B_}, v{B_+1}\nv_cvt_pk_bf16_f32 v{A_+3}, v{B_+2}, v{B_+3}")
        k = 0
        for u in range(4):
            a(f"s_waitcnt vmcnt({24-8*u})")
            ld = VREG[8*u:8*u+8]
            for e in range(8):
                d = TMP + 4 * (k & 3); k += 1
                s.perm_op(d, ld, e)
                c = "0" if u == 0 else vr(O+4*e, 4)
                a(f"v_mfma_f32_16x16x32_bf16 {vr(O+4*e,4)}, {vr(d,4)}, {vr(SREG[2*u],4)}, {c}")
        a(f"""
        s_mul_i32 s{S_T0}, s{S_WAVE}, {SLAB}
        v_lshlrev_b32 v12, 7, v2
        v_lshl_add_u32 v12, v3, 4, v12
        v_add_u32 v12, s{S_T0}, v12
        s_mov_b32 exec_lo, 0x00ff00ff
        s_mov_b32 exec_hi, 0x00ff00ff
        """)
        for e in range(8):
            a(f"ds_write_b128 v12, {vr(O+4*e,4)} offset:{L_SLAB + 528*e}")
        a("s_mov_b64 exec, -1")
        a.label("L_tail")

    def w2(s):
        a = s.a
        a.label("L_w2")
        s.lds_wait(F_CNT, 8, 12)
        T = 224
        a(f"""
        v_lshlrev_b32 v14, 3, v1
        ds_read_b64 v[12:13], v14 offset:{L_ST}
        s_waitcnt lgkmcnt(0)
        v_mov_b32 v{T}, v12
        """)
        s.red_row("max", T, [8]); s.red_16("max", T, T+2); s.red_32("max", T, T+2)
        a(f"""
        v_sub_f32 v{T+1}, v12, v{T}
        v_mul_f32 v{T+1}, s{S_LOG2E}, v{T+1}
        v_exp_f32 v{T+1}, v{T+1}
        v_mul_f32 v{T+1}, v{T+1}, v13
        """)
        s.red_row("add", T+1, [8]); s.red_16("add", T+1, T+2); s.red_32("add", T+1, T+2)
        a(f"""
        v_min_u32 v{T}, -2, v{T}
        v_min_u32 v{T+1}, -2, v{T+1}
        s_lshl_b32 s{S_T2}, s{S_G8}, 11
        s_add_u32 s{S_T2}, s{S_T2}, {ML}
        s_lshl_b32 s{S_T0}, s{S_C}, 6
        s_add_u32 s{S_T0}, s{S_T0}, s{S_T2}
        s_mov_b64 exec, 0xff
        buffer_store_dwordx2 {vr(T,2)}, v14, {sr(R_WS,4)}, s{S_T0} offen sc1
        s_mov_b64 exec, -1
        """)
        G_ = T + 4
        a("s_waitcnt vmcnt(0)")
        s.poll_all([f"buffer_load_dwordx2 {vr(G_+2*i,2)}, v14, {sr(R_WS,4)}, s{S_T2} offen offset:{512*i} sc1" for i in range(4)],
                   range(G_, G_ + 8), T + 2, sleep=12)
        a(f"v_max3_f32 v{T}, v{G_}, v{G_+2}, v{G_+4}\nv_max_f32 v{T}, v{T}, v{G_+6}")
        s.red_row("max", T, [8]); s.red_16("max", T, T+2); s.red_32("max", T, T+2)
        for i in range(4):
            a(f"v_sub_f32 v{G_+2*i}, v{G_+2*i}, v{T}\nv_mul_f32 v{G_+2*i}, s{S_LOG2E}, v{G_+2*i}\nv_exp_f32 v{G_+2*i}, v{G_+2*i}")
        a(f"v_mul_f32 v{T+1}, v{G_}, v{G_+1}")
        for i in range(1, 4): a(f"v_fmac_f32 v{T+1}, v{G_+2*i}, v{G_+2*i+1}")
        s.red_row("add", T+1, [8]); s.red_16("add", T+1, T+2); s.red_32("add", T+1, T+2)
        a(f"""
        v_rcp_f32 v{T+1}, v{T+1}
        v_sub_f32 v12, v12, v{T}
        v_mul_f32 v12, s{S_LOG2E}, v12
        v_exp_f32 v12, v12
        v_mul_f32 v12, v12, v{T+1}
        v_lshlrev_b32 v14, 2, v1
        ds_write_b32 v14, v12 offset:{L_F}
        """)
        s.lds_set(F_F, 1, T)
        s.stamp(1, "pro")
        a("s_branch L_vtick")

    def w3(s):
        a = s.a
        a.label("L_w3")
        T = 224
        s.lds_wait(F_CLR, 2, 12)
        a(f"""
        v_lshrrev_b32 v12, 2, v1
        v_lshlrev_b32 v12, 9, v12
        v_and_b32 v13, 3, v1
        v_lshl_add_u32 v12, v13, 4, v12
        s_lshl_b32 s{S_T2}, s{S_C}, 13
        s_lshl_b32 s{S_T0}, s{S_G8}, 6
        s_add_u32 s{S_T2}, s{S_T2}, s{S_T0}
        s_add_u32 s{S_T2}, s{S_T2}, {MP}
        """)
        s.poll_all([f"buffer_load_dwordx4 {vr(T,4)}, v12, {sr(R_WS,4)}, s{S_T2} offen sc1"], range(T, T+4), T + 4, sleep=16)
        for q in range(4):
            s.red_row("add", T+q, [8]); s.red_16("add", T+q, T+4); s.red_32("add", T+q, T+4)
            s.rnd(T+q, T+q)
        a(f"""
        v_bfe_u32 v12, v1, 2, 1
        v_lshlrev_b32 v12, 14, v12
        v_lshl_add_u32 v12, v13, 4, v12
        s_lshl_b32 s{S_T0}, s2, 6
        s_add_u32 s{S_T0}, s{S_T0}, {MF}
        s_mov_b64 exec, 0xff
        buffer_store_dwordx4 {vr(T,4)}, v12, {sr(R_WS,4)}, s{S_T0} offen sc1
        s_mov_b64 exec, -1
        """)
        s.stamp(1, "pro")
        a(f"""
        v_lshlrev_b32 v12, 4, v1
        s_and_b32 s{S_T2}, s2, 1
        s_lshl_b32 s{S_T2}, s{S_T2}, 14
        s_waitcnt vmcnt(0)
        """)
        a("s_sleep 32")
        for half in range(2):
            loads = []
            for hi in range(2):
                a(f"s_add_u32 s{M0+hi}, s{S_T2}, {MF + 4096*(2*half+hi)}")
                for lo in range(4):
                    loads.append(f"buffer_load_dwordx4 {vr(T+16*hi+4*lo,4)}, v12, {sr(R_WS,4)}, s{M0+hi} offen offset:{1024*lo} sc1")
            s.poll_all(loads, range(T, T+32), 13, sleep=32)
            for k in range(8):
                a(f"ds_write_b128 v12, {vr(T+4*k,4)} offset:{L_MOD + 1024*(8*half+k)}")
            a("s_waitcnt lgkmcnt(0)")
        s.stamp(2, "pro")
        a("s_branch L_vtick")

    def ln_reduce(s, x0, x1, area, t):
        a = s.a
        a(f"""
        v_readfirstlane_b32 s{S_T0}, v{x0}
        v_subrev_f32 v{t+2}, s{S_T0}, v{x0}
        v_subrev_f32 v{t+3}, s{S_T0}, v{x1}
        v_add_f32 v{t}, v{t+2}, v{t+3}
        v_mul_f32 v{t+1}, v{t+2}, v{t+2}
        v_fmac_f32 v{t+1}, v{t+3}, v{t+3}
        """)
        for k in [8, 4, 2, 1]:
            s.red_row("add", t, [k]); s.red_row("add", t+1, [k])
        a(f"""
        v_permlane16_swap_b32 v{t}, v{t+1}
        v_add_f32 v{t}, v{t}, v{t+1}
        """)
        s.red_32("add", t, t+1)
        a(f"""
        v_mov_b32 v{t+1}, v{t}
        v_permlane16_swap_b32 v{t}, v{t+1}
        """)
        a(f"""
        v_mul_f32 v{t+2}, {hexf(1/128)}, v{t}
        v_fma_f32 v{t+1}, -v{t+2}, v{t}, v{t+1}
        v_add_f32 v{t}, s{S_T0}, v{t+2}
        s_lshl_b32 s{S_T1}, s{S_WAVE}, 3
        v_mov_b32 v{t+2}, s{S_T1}
        s_mov_b64 exec, 1
        ds_write_b64 v{t+2}, {vr(t,2)} offset:{area}
        s_mov_b64 exec, -1
        v_and_b32 v{t+2}, 7, v1
        v_lshlrev_b32 v{t+2}, 3, v{t+2}
        s_waitcnt lgkmcnt(0)
        s_barrier
        ds_read_b64 {vr(t,2)}, v{t+2} offset:{area}
        """)
    def ln_finish(s, t):
        a = s.a
        dpp8 = ["row_half_mirror", "quad_perm:[2,3,0,1]", "quad_perm:[1,0,3,2]"]
        a(f"v_mov_b32 v{t+2}, v{t}")
        for d in dpp8: a(f"v_add_f32_dpp v{t+2}, v{t+2}, v{t+2} {d} row_mask:0xf bank_mask:0xf")
        a(f"""
        v_mul_f32 v{t+2}, {hexf(0.125)}, v{t+2}
        v_sub_f32 v{t}, v{t}, v{t+2}
        v_mul_f32 v{t}, v{t}, v{t}
        v_fmamk_f32 v{t+1}, v{t}, {hexf(128.0)}, v{t+1}
        """)
        for d in dpp8: a(f"v_add_f32_dpp v{t+1}, v{t+1}, v{t+1} {d} row_mask:0xf bank_mask:0xf")
        a(f"v_mul_f32 v{t+1}, {hexf(1/1024)}, v{t+1}\nv_mov_b32 v{t}, v{t+2}")
        s.ln_scalars(t, t+1)

    def tail(s):
        a = s.a
        WO, RAW, XF = s.WO, s.RAW, s.XF
        a("s_waitcnt lgkmcnt(0)\ns_barrier")
        s.stamp(6, "pro"); s.stamp(1, "tail"); s.stamp(6, "str")
        a(f"s_cmp_ge_u32 s{S_WAVE}, 4\ns_cbranch_scc1 L_nopub")
        a(f"""
        v_and_b32 v12, 7, v0
        v_bfe_u32 v13, v0, 3, 2
        v_lshrrev_b32 v14, 5, v0
        v_mul_u32_u24 v15, 528, v12
        v_lshl_add_u32 v15, v13, 7, v15
        v_lshl_add_u32 v15, v14, 4, v15
        """)
        for w in range(8):
            a(f"ds_read_b128 {vr(48+4*w,4)}, v15 offset:{L_SLAB + SLAB*w}")
        a(f"""
        v_lshlrev_b32 v16, 14, v14
        v_lshl_add_u32 v16, v13, 12, v16
        v_lshl_add_u32 v16, v12, 3, v16
        s_and_b32 s{S_T0}, s{S_G8}, 3
        s_lshl_b32 s{S_T0}, s{S_T0}, 17
        s_lshr_b32 s{S_T1}, s{S_G8}, 2
        s_lshl_b32 s{S_T1}, s{S_T1}, 11
        s_add_u32 s{S_T0}, s{S_T0}, s{S_T1}
        s_lshl_b32 s{S_T1}, s{S_C}, 6
        s_add_u32 s{S_T0}, s{S_T0}, s{S_T1}
        s_add_u32 s{S_T0}, s{S_T0}, {H1}
        s_waitcnt lgkmcnt(0)
        """)
        for (x, y) in [(0,1),(2,3),(4,5),(6,7),(0,2),(4,6),(0,4)]:
            for h in range(2):
                a(f"v_pk_add_f32 {vr(48+4*x+2*h,2)}, {vr(48+4*x+2*h,2)}, {vr(48+4*y+2*h,2)}")
        a(f"""
        v_cvt_pk_bf16_f32 v52, v48, v49
        v_cvt_pk_bf16_f32 v53, v50, v51
        v_min_u32 v52, -2, v52
        v_min_u32 v53, -2, v53
        buffer_store_dwordx2 v[52:53], v16, {sr(R_WS,4)}, s{S_T0} offen sc1
        s_waitcnt vmcnt(1)
        s_branch L_pubdone
        """)
        a.label("L_nopub")
        a("s_waitcnt vmcnt(0)")
        a.label("L_pubdone")
        WB = 24
        ld = [WO + 2 * j for j in range(8)]
        for e in range(4): s.perm_op(WB + 4 * e, ld, e)
        a(f"""
        v_and_b32 v12, 1, v3
        v_lshlrev_b32 v12, 11, v12
        v_lshrrev_b32 v13, 1, v3
        v_lshl_add_u32 v12, v13, 6, v12
        v_lshl_add_u32 v12, v2, 4, v12
        s_lshl_b32 s{S_T0}, s{S_G8}, 1
        s_and_b32 s{S_T1}, s{S_C}, 1
        s_add_u32 s{S_T0}, s{S_T0}, s{S_T1}
        s_lshl_b32 s{S_T2}, s{S_T0}, 3
        s_add_u32 s{S_T2}, s{S_T2}, s{S_WAVE}
        s_lshl_b32 s{S_T2}, s{S_T2}, 12
        s_add_u32 s{S_T2}, s{S_T2}, {H1}
        """)
        CO = 160
        a(f"s_mov_b32 s{S_T0}, {hexf(K1)}\nv_mov_b32 v20, {hexf(K0)}")
        for k in range(7):
            for ai, d in enumerate([16, 17, 18]):
                src = RAW[4*ai + k//2]
                if k & 1: a(f"v_and_b32 v{d}, 0xffff0000, v{src}")
                else: a(f"v_lshlrev_b32 v{d}, 16, v{src}")
            c = CO + 6 * k
            a(f"""
            v_mul_f32 v19, v17, v17
            v_mul_f32 v19, s{S_T0}, v19
            v_add_f32 v{c}, v20, v19
            v_mul_f32 v{c}, v{c}, v17
            v_fmamk_f32 v{c+1}, v19, {hexf(3.0)}, v20
            v_mul_f32 v{c+1}, v{c+1}, v16
            v_mul_f32 v19, v16, v16
            v_mul_f32 v19, s{S_T0}, v19
            v_mul_f32 v{c+3}, v19, v16
            v_mul_f32 v19, v19, v17
            v_mul_f32 v{c+2}, {hexf(3.0)}, v19
            v_mul_f32 v{c+4}, v17, v18
            v_mul_f32 v{c+5}, v16, v18
            """)
        a(f"""
        v_lshlrev_b32 v13, 2, v11
        ds_read_b64 v[40:41], v13 offset:{L_MOD}
        ds_read_b64 v[42:43], v13 offset:{L_MOD+4096}
        ds_read_b64 v[44:45], v13 offset:{L_MOD+8192}
        v_lshlrev_b32 v46, 16, v{XF}
        v_and_b32 v47, 0xffff0000, v{XF}
        s_waitcnt lgkmcnt(0)
        v_add_f32 v44, 1.0, v44
        v_add_f32 v45, 1.0, v45
        """)
        s.rnd(44, 44); s.rnd(45, 45)
        s.poll_masked([(f"buffer_load_dwordx4 {vr(48+4*t,4)}, v12, {sr(R_WS,4)}, s{S_T2} offen offset:{512*t} sc1", range(48+4*t, 52+4*t)) for t in range(4)], 16)
        s.stamp(2, "tail")
        ACC = 64
        for t in range(4):
            for e in range(4):
                c = "0" if t == 0 else vr(ACC+4*e, 4)
                a(f"v_mfma_f32_16x16x32_bf16 {vr(ACC+4*e,4)}, {vr(48+4*t,4)}, {vr(WB+4*e,4)}, {c}")
        a(f"""
        s_lshl_b32 s{S_T0}, s{S_WAVE}, 10
        v_lshl_add_u32 v12, v1, 4, s{S_T0}
        """)
        for e in range(4):
            a(f"v_pk_add_f32 {vr(ACC+4*e,2)}, {vr(ACC+4*e,2)}, {vr(ACC+4*e+2,2)}")
        for e in range(4):
            a(f"v_permlane32_swap_b32 v{ACC+4*e}, v{ACC+4*e+1}")
        for e in range(4):
            a(f"v_add_f32 v{80+e}, v{ACC+4*e}, v{ACC+4*e+1}")
        a(f"""
        ds_write_b128 v12, v[80:83] offset:{L_S2}
        s_waitcnt lgkmcnt(0)
        s_barrier
        s_cmp_lg_u32 s{S_WAVE}, 0
        s_cbranch_scc1 L_nopub2
        """)
        for w in range(8):
            a(f"ds_read_b128 {vr(48+4*w,4)}, v12 offset:{L_S2 + 1024*w}")
        a(f"""
        v_lshrrev_b32 v13, 5, v1
        v_lshlrev_b32 v13, 16, v13
        v_lshl_add_u32 v13, v3, 4, v13
        s_lshl_b32 s{S_T0}, s{S_G8}, 1
        s_and_b32 s{S_T1}, s{S_C}, 1
        s_add_u32 s{S_T0}, s{S_T0}, s{S_T1}
        s_lshl_b32 s{S_T0}, s{S_T0}, 12
        s_lshr_b32 s{S_T1}, s2, 4
        s_lshl_b32 s{S_T1}, s{S_T1}, 8
        s_add_u32 s{S_T0}, s{S_T0}, s{S_T1}
        s_add_u32 s{S_T0}, s{S_T0}, {AP}
        s_waitcnt lgkmcnt(0)
        """)
        for (x, y) in [(0,1),(2,3),(4,5),(6,7),(0,2),(4,6),(0,4)]:
            for h in range(2):
                a(f"v_pk_add_f32 {vr(48+4*x+2*h,2)}, {vr(48+4*x+2*h,2)}, {vr(48+4*y+2*h,2)}")
        for q in range(4): a(f"v_mov_b32 v{52+q}, v{48+q}")
        for q in range(4): a(f"v_permlane16_swap_b32 v{48+q}, v{52+q}")
        for q in range(4): a(f"v_add_f32 v{48+q}, v{48+q}, v{52+q}")
        for q in range(4): a(f"v_min_u32 v{48+q}, -2, v{48+q}")
        a(f"""
        s_mov_b32 exec_lo, 0x0000ffff
        s_mov_b32 exec_hi, 0x0000ffff
        buffer_store_dwordx4 v[48:51], v13, {sr(R_WS,4)}, s{S_T0} offen sc1
        s_mov_b64 exec, -1
        s_nop 1
        """)
        a.label("L_nopub2")
        a("s_barrier")
        s.stamp(3, "tail")
        a(f"""
        v_lshrrev_b32 v12, 5, v1
        v_lshlrev_b32 v12, 15, v12
        v_and_b32 v13, 31, v1
        v_lshl_add_u32 v12, v13, 4, v12
        s_and_b32 s{S_T0}, s2, 1
        s_lshl_b32 s{S_T0}, s{S_T0}, 16
        s_lshl_b32 s{S_T1}, s{S_WAVE}, 9
        s_add_u32 s{S_T0}, s{S_T0}, s{S_T1}
        s_add_u32 s{S_T0}, s{S_T0}, {AP}
        """)
        for i in range(8):
            a(f"v_add_u32 v{112+i}, {4096*i}, v12")
        s.poll_masked([(f"buffer_load_dwordx4 {vr(64+4*i,4)}, v{112+i}, {sr(R_WS,4)}, s{S_T0} offen sc1", range(64+4*i, 68+4*i)) for i in range(8)], 16)
        s.stamp(4, "tail")
        for (x, y) in [(0,1),(2,3),(4,5),(6,7),(0,2),(4,6),(0,4)]:
            for h in range(2):
                a(f"v_pk_add_f32 {vr(64+4*x+2*h,2)}, {vr(64+4*x+2*h,2)}, {vr(64+4*y+2*h,2)}")
        a(f"""
        v_permlane32_swap_b32 v64, v66
        v_permlane32_swap_b32 v65, v67
        v_add_f32 v64, v64, v66
        v_add_f32 v65, v65, v67
        """)
        for q in range(2): s.rnd(64+q, 64+q)
        for q in range(2): a(f"v_mul_f32 v{64+q}, v{64+q}, v{40+q}")
        for q in range(2): s.rnd(64+q, 64+q)
        for q in range(2): a(f"v_add_f32 v{64+q}, v{64+q}, v{46+q}")
        for q in range(2): s.rnd(64+q, 64+q)
        a(f"v_lshlrev_b32 v13, 2, v11\nv_add_u32 v13, {L_HL}, v13")
        a(f"ds_write_b64 v13, v[64:65] offset:{L_X2-L_HL}")
        s.ln_reduce(64, 65, L_RED, 68)
        a("s_waitcnt lgkmcnt(0)")
        s.ln_finish(68)
        for q in range(2): a(f"v_sub_f32 v{66+q}, v{64+q}, v68")
        for q in range(2): s.rnd(66+q, 66+q)
        for q in range(2): a(f"v_mul_f32 v{66+q}, v{66+q}, v69")
        for q in range(2): s.rnd(66+q, 66+q)
        for q in range(2): a(f"v_mul_f32 v{66+q}, v{66+q}, v{44+q}")
        for q in range(2): s.rnd(66+q, 66+q)
        for q in range(2): a(f"v_add_f32 v{66+q}, v{66+q}, v{42+q}")
        for q in range(2): s.rnd(66+q, 66+q)
        a("ds_write_b64 v13, v[66:67]")
        s.ln_reduce(66, 67, L_RED + 64, 68)
        a(f"""
        s_lshr_b32 s{S_T0}, s2, 1
        s_lshl_b32 s{S_T0}, s{S_T0}, 5
        s_add_u32 s{S_T2}, s{S_T0}, {L_HL}
        v_mov_b32 v14, s{S_T2}
        ds_read_b128 v[80:83], v14
        ds_read_b128 v[84:87], v14 offset:16
        s_waitcnt lgkmcnt(0)
        """)
        s.ln_finish(68)
        for q in range(8): a(f"v_sub_f32 v{80+q}, v{80+q}, v68")
        for q in range(8): s.rnd(80+q, 80+q)
        for q in range(8): a(f"v_mul_f32 v{80+q}, v{80+q}, v69")
        for q in range(8): s.rnd(80+q, 80+q)
        for p in range(4): a(f"v_pk_mul_f32 {vr(88+2*p,2)}, {vr(80+2*p,2)}, {vr(80+2*p,2)}")
        for p in range(4): a(f"v_pk_mul_f32 {vr(96+2*p,2)}, {vr(88+2*p,2)}, {vr(80+2*p,2)}")
        s.stamp(5, "tail")
        a("v_mov_b32 v104, 1.0\nv_mov_b32 v105, 1.0")
        Y = 48; Z = 112; GG = 120
        for k in range(7):
            c = 160 + 6 * k
            for p in range(4):
                a(f"v_pk_fma_f32 {vr(Z+2*p,2)}, {vr(c,2)}, {vr(80+2*p,2)}, {vr(c,2)} op_sel:[1,0,0] op_sel_hi:[1,1,0]")
            for p in range(4):
                a(f"v_pk_fma_f32 {vr(Z+2*p,2)}, {vr(c+2,2)}, {vr(88+2*p,2)}, {vr(Z+2*p,2)} op_sel:[0,0,0] op_sel_hi:[0,1,1]")
            for p in range(4):
                a(f"v_pk_fma_f32 {vr(Z+2*p,2)}, {vr(c+2,2)}, {vr(96+2*p,2)}, {vr(Z+2*p,2)} op_sel:[1,0,0] op_sel_hi:[1,1,1]")
            for q in range(8): a(f"v_exp_f32 v{Z+q}, v{Z+q}")
            for p in range(4):
                a(f"v_pk_fma_f32 {vr(GG+2*p,2)}, {vr(c+4,2)}, {vr(80+2*p,2)}, {vr(c+4,2)} op_sel:[1,0,0] op_sel_hi:[1,1,0]")
            for p in range(4):
                a(f"v_pk_add_f32 {vr(Z+2*p,2)}, {vr(Z+2*p,2)}, v[104:105]")
            for q in range(8): a(f"v_rcp_f32 v{Z+q}, v{Z+q}")
            for p in range(4):
                if k == 0: a(f"v_pk_mul_f32 {vr(Y+2*p,2)}, {vr(GG+2*p,2)}, {vr(Z+2*p,2)}")
                else: a(f"v_pk_fma_f32 {vr(Y+2*p,2)}, {vr(GG+2*p,2)}, {vr(Z+2*p,2)}, {vr(Y+2*p,2)}")
        s.stamp(6, "tail")
        for q in range(4): a(f"v_permlane32_swap_b32 v{Y+q}, v{Y+4+q}")
        for q in range(4): a(f"v_add_f32 v{Y+q}, v{Y+q}, v{Y+4+q}")
        for q in range(2): a(f"v_permlane16_swap_b32 v{Y+q}, v{Y+2+q}")
        for q in range(2): a(f"v_add_f32 v{Y+q}, v{Y+q}, v{Y+2+q}")
        for k in [8, 4, 2, 1]:
            for q in range(2): s.red_row("add", Y+q, [k])
        a(f"""
        s_lshl_b32 s{S_T0}, s{S_WAVE}, 5
        v_lshl_add_u32 v12, v2, 3, s{S_T0}
        s_mov_b32 exec_lo, 0x00010001
        s_mov_b32 exec_hi, 0x00010001
        ds_write_b64 v12, {vr(Y,2)} offset:{L_RED+128}
        s_mov_b64 exec, -1
        s_waitcnt lgkmcnt(0)
        s_barrier
        s_cmp_lg_u32 s{S_WAVE}, 0
        s_cbranch_scc1 L_fin
        v_lshlrev_b32 v12, 2, v1
        ds_read_b32 v48, v12 offset:{L_RED+128}
        v_and_b32 v13, 7, v1
        v_lshl_add_u32 v13, v13, 2, s{S_T2}
        ds_read_b32 v49, v13 offset:{L_X2-L_HL}
        v_subrev_u32 v13, {L_HL - L_MOD - 12288}, v13
        ds_read_b32 v50, v13
        s_lshl_b32 s{S_B2}, s{S_B2}, 16
        s_waitcnt lgkmcnt(0)
        """)
        s.red_row("add", 48, [8]); s.red_16("add", 48, 51); s.red_32("add", 48, 51)
        s.rnd(48, 48)
        a(f"v_add_f32 v48, s{S_B2}, v48"); s.rnd(48, 48)
        a("v_mul_f32 v48, v48, v50"); s.rnd(48, 48)
        a("v_add_f32 v48, v48, v49")
        a("v_cvt_pk_bf16_f32 v48, v48, v48")
        s.srd(R_U, P_OUT, 4096)
        a(f"""
        v_lshlrev_b32 v12, 1, v1
        s_and_b32 s{S_T0}, s2, 1
        s_lshl_b32 s{S_T0}, s{S_T0}, 11
        s_lshr_b32 s{S_T1}, s2, 1
        s_lshl_b32 s{S_T1}, s{S_T1}, 4
        s_add_u32 s{S_T0}, s{S_T0}, s{S_T1}
        s_mov_b64 exec, 0xff
        buffer_store_short v48, v12, {sr(R_U,4)}, s{S_T0} offen
        s_cmp_lg_u32 s2, 0
        s_cbranch_scc1 L_noepo
        s_mul_i32 s{S_T2}, s{S_EPO}, 0x9e3779b1
        s_add_u32 s{S_T2}, s{S_T2}, 0x7f4a7c15
        s_mov_b64 exec, 1
        v_mov_b32 v49, s{S_T2}
        v_mov_b32 v50, {EPO}
        buffer_store_dword v49, v50, {sr(R_WS,4)}, 0 offen
        L_noepo:
        s_mov_b64 exec, -1
        """)
        a.label("L_fin")
        if s.stamps:
            a(f"s_memrealtime s[{M0}:{M0+1}]\ns_waitcnt lgkmcnt(0)")
            for i in range(14): a(f"v_mov_b32 v{48+i}, s{S_ST+i}")
            a(f"v_mov_b32 v62, s{M0}\nv_mov_b32 v63, s{M0+1}")
            a(f"""
            s_lshl_b32 s{S_T0}, s2, 3
            s_add_u32 s{S_T0}, s{S_T0}, s{S_WAVE}
            s_lshl_b32 s{S_T0}, s{S_T0}, 6
            s_add_u32 s{S_T0}, s{S_T0}, {STAMP}
            v_mov_b32 v12, 0
            s_mov_b64 exec, 1
            """)
            for i in range(4):
                a(f"buffer_store_dwordx4 {vr(48+4*i,4)}, v12, {sr(R_WS,4)}, s{S_T0} offen offset:{16*i}")
        a("s_endpgm")

    def build(s):
        a = s.a
        if s.stamps:
            pass
        s.prologue()
        if s.stamps:
            pass
        s.w0(); s.w7(); s.w1()
        s.stream()
        s.tail()
        s.w2(); s.w3()
        a.label("L_end")
        a("s_endpgm")
        ref = open("adaLN_cond__gqa_block_cached__mixer_token_mlp__decode.s.ref").read()
        head = ref.split("; Override launch")[0]
        out = head + f"; @launch grid=(256,1,1) block=(512,1,1) lds={LDS_BYTES}\n"
        out += f""".amdgcn_target "amdgcn-amd-amdhsa--gfx950"
.text
.globl {NAME}
.p2align 8
.type {NAME},@function
{NAME}:
"""
        out += a.text()
        out += f""".section .rodata,"a"
.p2align 6
.amdhsa_kernel {NAME}
  .amdhsa_next_free_vgpr 256
  .amdhsa_next_free_sgpr 102
  .amdhsa_accum_offset 256
  .amdhsa_group_segment_fixed_size 0
  .amdhsa_kernarg_size 120
  .amdhsa_user_sgpr_count 2
  .amdhsa_user_sgpr_kernarg_segment_ptr 1
  .amdhsa_system_sgpr_workgroup_id_x 1
  .amdhsa_float_denorm_mode_32 3
.end_amdhsa_kernel
"""
        return out

if __name__ == "__main__":
    import argparse
    ap = argparse.ArgumentParser()
    ap.add_argument("-o", default="k.s"); ap.add_argument("--stamps", default=None); ap.add_argument("--nt", default="nt"); ap.add_argument("--depth", type=int, default=28)
    args = ap.parse_args()
    g = G(stamps=args.stamps, nt=args.nt, depth=args.depth)
    open(args.o, "w").write(g.build())
    print("nops inserted:", g.a.nops, "lines:", len(g.a.out))
```

```python
import sys, math
from asmlib import Asm, hexf, f2u

NAME = "adaLN_cond__gqa_block_cached__mixer_token_mlp__decode_kernel"
HDR = open("adaLN_cond__gqa_block_cached__mixer_token_mlp__decode.s.ref").read().split("; Override launch")[0] if len(sys.argv) > 99 else ""

P1P = 0x000000
SA  = 0x100000
QP  = SA + 0x000000
MP  = SA + 0x040000
H1  = SA + 0x080000
AP  = SA + 0x100000
MF  = SA + 0x120000
ML  = SA + 0x128000
FLG = 0x040000
EPO = 0x050000
STAMP = 0x8000000
F_TOK, F_Q, F_CNT, F_F, F_ALL, F_CLR, F_K, F_NEXT = 0, 4, 8, 12, 16, 20, 24, 32
L_H   = 0x100
L_Q   = 0x400
L_ST  = 0x1000
L_F   = 0x1200
L_RED = 0x1400
L_SLAB = 0x1800
SLAB = 4224
L_MOD = 0x9C00
L_S2  = 0xDC00
L_HL  = 0x10000
L_X2  = 0x11000
L_KB  = 0x12000
LDS_BYTES = 0x22000

KOFF = [0, 128, 2048, 2176]
LOG2E = 1.4426950408889634
SCALE = 128 ** -0.5
K0 = -2.0 * math.sqrt(2.0 / math.pi) * LOG2E
K1 = K0 * 0.044715

def vr(a, n=1): return f"v[{a}:{a+n-1}]" if n > 1 else f"v{a}"
def sr(a, n=1): return f"s[{a}:{a+n-1}]" if n > 1 else f"s{a}"

S_WG, S_WAVE, S_G8, S_C = 2, 3, 5, 6
S_T0, S_T1, S_T2 = 7, 8, 9
S_BUD = 10
S_SELLO, S_SELHI = 11, 12
S_KV = 13
S_LOG2E, S_SCALE = 14, 15
P_X, P_K, P_V, P_WQ, P_WO, P_W1, P_B1, P_W2, P_B2, P_C, P_WM, P_OUT, P_DBG, P_WS = 16,18,20,22,24,28,30,32,34,36,38,40,42,44
S_B2 = 46
S_STATE = 47
S_P1 = 4
S_CR = 27
S_EPO = 26
R_K, R_V, R_WS, R_T, R_U = 48, 52, 56, 60, 64
M_H, M_B = 68, 70
M0 = 72
S_ST = 88

class G:
    def __init__(s, stamps=False, nt="nt", depth=20):
        s.a = Asm(); s.stamps = stamps; s.nt = nt; s.nst = 0; s.D = depth
    def srd(s, r, p, size):
        s.a(f"s_mov_b32 s{r}, s{p}\ns_mov_b32 s{r+1}, s{p+1}\ns_mov_b32 s{r+2}, {size}\ns_mov_b32 s{r+3}, 0x20000")
    def stamp(s, i, grp=None):
        if s.stamps and (grp is None or grp == s.stamps):
            assert i < 7
            s.a(f"s_memrealtime s[{S_ST+2*i}:{S_ST+2*i+1}]")
    def rnd(s, d, x):
        s.a(f"v_cvt_pk_bf16_f32 v{d}, 0, v{x}")
    def lds_wait(s, addr, val, vt, sleep=2, pad=True):
        a = s.a; L = a.newlabel("LW"); D = a.newlabel("LWD")
        a(f"v_mov_b32 v{vt+1}, 0")
        a.label(L)
        a(f"ds_read_b32 v{vt}, v{vt+1} offset:{addr}")
        a("s_waitcnt lgkmcnt(0)")
        a(f"v_readfirstlane_b32 s{S_T0}, v{vt}")
        a(f"s_cmp_ge_u32 s{S_T0}, {val}")
        a(f"s_cbranch_scc1 {D}", safe=True)
        a(f"s_sleep {sleep}")
        a(f"s_sub_u32 s{S_BUD}, s{S_BUD}, 1")
        a(f"s_cbranch_scc0 {L}", safe=True)
        a(f"s_mov_b32 s{S_BUD}, 0")
        a.label(D)
        if pad: a("s_nop 4")
    def lds_set(s, addr, val, vt):
        a = s.a
        a(f"v_mov_b32 v{vt}, {val}\nv_mov_b32 v{vt+1}, 0")
        a(f"ds_write_b32 v{vt+1}, v{vt} offset:{addr}")
    def ticket(s, vt):
        a = s.a
        a(f"""
        v_mov_b32 v{vt}, 1
        v_mov_b32 v{vt+1}, 0
        s_mov_b64 exec, 1
        ds_add_rtn_u32 v{vt}, v{vt+1}, v{vt} offset:{F_NEXT}
        s_mov_b64 exec, -1
        s_waitcnt lgkmcnt(0)
        v_readfirstlane_b32 s{S_CR}, v{vt}
        s_lshl_b32 s{S_CR}, s{S_CR}, 2
        s_add_u32 s{S_CR}, s{S_CR}, {4*8-3}
        """)
    def credit(s, vt):
        s.lds_wait(F_TOK, f"s{S_CR}", vt, sleep=1, pad=False)
        s.a(f"s_add_u32 s{S_CR}, s{S_CR}, 1")
    def paced(s, loads, vt, ramp=True, start=0, skip_first=False):
        st = s.D // 4
        for i, l in enumerate(loads):
            k = start + i
            if ramp and k % st == 0 and k < 4 * st and not (skip_first and k == 0): s.credit(vt)
            if k >= s.D: s.a(f"s_waitcnt vmcnt({s.D-1})")
            l()
        if ramp:
            n = start + len(loads)
            for k in range(0, 4 * st, st):
                if k >= n: s.credit(vt)
    def release(s, vt):
        a = s.a; st = s.D // 4
        a(f"v_mov_b32 v{vt}, 1\nv_mov_b32 v{vt+1}, 0\ns_mov_b64 exec, 1")
        for i in range(4):
            if i: a(f"s_waitcnt vmcnt({s.D - st*i})")
            a(f"ds_add_u32 v{vt+1}, v{vt} offset:{F_TOK}")
        a("s_mov_b64 exec, -1")
    def umax(s, d, regs):
        a = s.a; regs = list(regs)
        if len(regs) == 1: a(f"v_mov_b32 v{d}, v{regs[0]}"); return
        if len(regs) == 2: a(f"v_max_u32 v{d}, v{regs[0]}, v{regs[1]}"); return
        a(f"v_max3_u32 v{d}, v{regs[0]}, v{regs[1]}, v{regs[2]}"); regs = regs[3:]
        while len(regs) >= 2:
            a(f"v_max3_u32 v{d}, v{d}, v{regs[0]}, v{regs[1]}"); regs = regs[2:]
        if regs: a(f"v_max_u32 v{d}, v{d}, v{regs[0]}")
    def poll_all(s, loads, regs, vt, sleep=4):
        a = s.a; L = a.newlabel("PA"); D = a.newlabel("PAD")
        a.label(L)
        for l in loads: a(l)
        a("s_waitcnt vmcnt(0)")
        s.umax(vt, regs)
        a(f"v_cmp_eq_u32 vcc, -1, v{vt}")
        a(f"s_cbranch_vccz {D}", safe=True)
        if sleep: a(f"s_sleep {sleep}")
        a(f"s_sub_u32 s{S_BUD}, s{S_BUD}, 1")
        a(f"s_cbranch_scc0 {L}", safe=True)
        a(f"s_mov_b32 s{S_BUD}, 0")
        a.label(D)
        a("s_nop 4")
    def poll_masked(s, loads, vt):
        a = s.a; L = a.newlabel("PM"); D = a.newlabel("PMD")
        n = len(loads); assert n <= 8
        for l, _ in loads: a(l)
        a.label(L)
        a("s_waitcnt vmcnt(0)")
        for i, (l, regs) in enumerate(loads):
            s.umax(vt + i, regs)
        for i in range(n):
            a(f"v_cmp_eq_u32 s[{M0+2*i}:{M0+2*i+1}], -1, v{vt+i}")
        a(f"s_or_b64 vcc, s[{M0}:{M0+1}], s[{M0+2}:{M0+3}]")
        for i in range(2, n):
            a(f"s_or_b64 vcc, vcc, s[{M0+2*i}:{M0+2*i+1}]")
        a(f"s_cbranch_scc0 {D}", safe=True)
        for i, (l, _) in enumerate(loads):
            K = a.newlabel("PK")
            a(f"s_mov_b64 exec, s[{M0+2*i}:{M0+2*i+1}]")
            a(f"s_cbranch_execz {K}", safe=True)
            a(l)
            a.label(K)
        a("s_mov_b64 exec, -1")
        a(f"s_sub_u32 s{S_BUD}, s{S_BUD}, 1")
        a(f"s_cbranch_scc0 {L}", safe=True)
        a(f"s_mov_b32 s{S_BUD}, 0")
        a("s_waitcnt vmcnt(0)")
        a.label(D)
    def red_row(s, op, x, steps):
        for k in steps:
            s.a(f"v_{op}_f32_dpp v{x}, v{x}, v{x} row_ror:{k} row_mask:0xf bank_mask:0xf")
    def red_16(s, op, x, t):
        s.a(f"v_mov_b32 v{t}, v{x}\nv_permlane16_swap_b32 v{x}, v{t}\nv_{op}_f32 v{x}, v{x}, v{t}")
    def red_32(s, op, x, t):
        s.a(f"v_mov_b32 v{t}, v{x}\nv_permlane32_swap_b32 v{x}, v{t}\nv_{op}_f32 v{x}, v{x}, v{t}")

    def warm_code(s, vd):
        a = s.a; L = a.newlabel("PC")
        a(f"s_getpc_b64 s[{M0}:{M0+1}]")
        a.label(L)
        a(f"s_sub_u32 s{M0}, s{M0}, {L}-{NAME}")
        a(f"s_subb_u32 s{M0+1}, s{M0+1}, 0")
        a(f"v_lshlrev_b32 v{vd}, 6, v0")
        a(f"v_min_u32 v{vd}, L_end-{NAME}, v{vd}")
        a(f"global_load_dword v{vd}, v{vd}, s[{M0}:{M0+1}]")

    def silu_operand(s, base, t):
        a = s.a
        for i in range(16):
            r = base + i
            a(f"v_lshlrev_b32 v{t}, 16, v{r}")
            a(f"v_and_b32 v{t+1}, 0xffff0000, v{r}")
            a(f"v_mul_f32 v{t+2}, s{S_LOG2E}, v{t}")
            a(f"v_mul_f32 v{t+3}, s{S_LOG2E}, v{t+1}")
            a(f"v_exp_f32 v{t+2}, -v{t+2}")
            a(f"v_exp_f32 v{t+3}, -v{t+3}")
            a(f"v_add_f32 v{t+2}, 1.0, v{t+2}")
            a(f"v_add_f32 v{t+3}, 1.0, v{t+3}")
            a(f"v_rcp_f32 v{t+2}, v{t+2}")
            a(f"v_rcp_f32 v{t+3}, v{t+3}")
            a(f"v_mul_f32 v{t}, v{t}, v{t+2}")
            a(f"v_mul_f32 v{t+1}, v{t+1}, v{t+3}")
            a(f"v_cvt_pk_bf16_f32 v{r}, v{t}, v{t+1}")
    def load_c(s, base, vt):
        a = s.a
        s.srd(R_U, P_C, 4096)
        a(f"v_and_b32 v{vt}, 1, v3\nv_lshlrev_b32 v{vt}, 11, v{vt}\nv_lshl_add_u32 v{vt}, v2, 4, v{vt}")
        a(f"s_lshl_b32 s{S_T0}, s{S_G8}, 8")
        for t in range(4):
            a(f"buffer_load_dwordx4 {vr(base+4*t,4)}, v{vt}, {sr(R_U,4)}, s{S_T0} offen offset:{64*t}")
    def load_tile(s, base, w, voff, srd, sbase, stride, pace=None, vt=None):
        a = s.a
        sfx = {2: "x2", 4: "x4"}[w]
        for t in range(1, 4): a(f"v_add_u32 v{voff+t}, {32*t*stride}, v{voff}")
        for j in range(8): a(f"s_add_u32 s{M0+j}, s{sbase}, {j*stride}")
        L = []
        for t in range(4):
            for j in range(8):
                k = 8 * t + j
                L.append(lambda k=k, t=t, j=j: a(f"buffer_load_dword{sfx} {vr(base+w*k,w)}, v{voff+t}, {sr(srd,4)}, s{M0+j} offen {s.nt}"))
        if pace is None:
            for l in L: l()
        else:
            s.paced(L, vt, ramp=(pace == "ramp"))
            s.release(vt)
    def perm_op(s, dst, ld, e):
        sel = S_SELHI if e & 1 else S_SELLO
        for jj in range(4):
            s.a(f"v_perm_b32 v{dst+jj}, v{ld[2*jj+1]+(e>>1)}, v{ld[2*jj]+(e>>1)}, s{sel}")
    def gemv(s, tile, w, aop, acc, tmp, waits=None):
        a = s.a; ne = 2 * w; k = 0
        for t in range(4):
            if waits is not None: a(f"s_waitcnt vmcnt({waits[t]})")
            ld = [tile + w * (8 * t + j) for j in range(8)]
            for e in range(ne):
                d = tmp + 4 * (k & 3); k += 1
                s.perm_op(d, ld, e)
                c = "0" if t == 0 else vr(acc + 4 * e, 4)
                a(f"v_mfma_f32_16x16x32_bf16 {vr(acc+4*e,4)}, {vr(aop+4*t,4)}, {vr(d,4)}, {c}")
    def sel128(s, acc, out, t):
        a = s.a
        for q in range(4):
            a(f"v_cndmask_b32 v{t}, v{acc+4*q}, v{acc+4*(4+q)}, s[{M_H}:{M_H+1}]")
            a(f"v_cndmask_b32 v{t+1}, v{acc+4*q+1}, v{acc+4*(4+q)+1}, s[{M_H}:{M_H+1}]")
            a(f"v_cndmask_b32 v{out+q}, v{t}, v{t+1}, s[{M_B}:{M_B+1}]")
            a(f"v_min_u32 v{out+q}, -2, v{out+q}")

    def prologue(s):
        a = s.a
        a(f"""
        s_cmp_ge_u32 s2, 256
        s_cbranch_scc1 L_end
        s_load_dwordx16 s[16:31], s[0:1], 0
        s_load_dwordx8 s[32:39], s[0:1], 64
        s_load_dwordx4 s[40:43], s[0:1], 96
        s_load_dwordx2 s[44:45], s[0:1], 112
        """)
        s.warm_code(47)
        s.stamp(0)
        a(f"""
        v_lshrrev_b32 v4, 6, v0
        v_and_b32 v1, 63, v0
        v_readfirstlane_b32 s{S_WAVE}, v4
        v_lshrrev_b32 v2, 4, v1
        v_and_b32 v3, 15, v1
        v_mov_b32 v4, 0
        v_lshlrev_b32 v5, 2, v1
        ds_write_b32 v5, v4
        s_and_b32 s{S_G8}, s2, 7
        s_lshr_b32 s{S_C}, s2, 3
        s_mov_b32 s{S_BUD}, 400000
        s_mov_b32 s{S_SELLO}, 0x05040100
        s_mov_b32 s{S_SELHI}, 0x07060302
        s_mov_b32 s{S_LOG2E}, {hexf(LOG2E)}
        s_mov_b32 s{S_SCALE}, {hexf(SCALE)}
        s_mov_b32 s{M_H}, 0xffff0000
        s_mov_b32 s{M_H+1}, 0xffff0000
        s_mov_b32 s{M_B}, 0
        s_mov_b32 s{M_B+1}, -1
        s_lshl_b32 s{S_KV}, s{S_G8}, 23
        s_lshl_b32 s{S_T0}, s{S_C}, 18
        s_add_u32 s{S_KV}, s{S_KV}, s{S_T0}
        s_lshl_b32 s{S_T0}, s{S_WAVE}, 15
        s_add_u32 s{S_KV}, s{S_KV}, s{S_T0}
        s_waitcnt lgkmcnt(0)
        """)
        s.srd(R_K, P_K, 0x4000000); s.srd(R_V, P_V, 0x4000000); s.srd(R_WS, P_WS, 0x10000000)
        s.srd(R_T, P_WM, 12582912); s.srd(R_U, P_C, 4096)
        a(f"""
        s_load_dword s{S_B2}, s[{P_B2}:{P_B2+1}], 0
        s_load_dword s{S_EPO}, s[{P_WS}:{P_WS+1}], {EPO}
        s_lshr_b32 s{S_P1}, s{S_C}, 1
        s_lshl_b32 s{S_P1}, s{S_P1}, 3
        s_add_u32 s{S_P1}, s{S_P1}, s{S_G8}
        s_lshl_b32 s{S_P1}, s{S_P1}, 10
        s_and_b32 s{S_T2}, s{S_C}, 1
        s_lshl_b32 s{S_T2}, s{S_T2}, 8
        s_add_u32 s{S_P1}, s{S_P1}, s{S_T2}
        s_barrier
        s_cmp_eq_u32 s{S_WAVE}, 1
        s_cbranch_scc1 L_w1
        s_cmp_eq_u32 s{S_WAVE}, 7
        s_cbranch_scc1 L_w7
        s_cmp_gt_u32 s{S_WAVE}, 1
        s_cbranch_scc1 L_stream
        """)

    def w0(s):
        a = s.a
        a.label("L_w0")
        a("s_setprio 3")
        s.load_c(4, 99)
        a(f"""
        v_mul_u32_u24 v100, {8*12288}, v2
        v_lshl_add_u32 v100, v3, 3, v100
        s_mul_i32 s{S_T2}, s{S_G8}, {128*12288}
        s_lshl_b32 s{S_T0}, s{S_C}, 7
        s_add_u32 s{S_T0}, s{S_T2}, s{S_T0}
        """)
        s.load_tile(20, 2, 100, R_T, S_T0, 12288)
        s.stamp(1, "w0")
        a("s_waitcnt vmcnt(32)")
        s.silu_operand(4, 104)
        s.gemv(20, 2, 4, 84, 104, waits=[24, 16, 8, 0])
        for e in range(4):
            a(f"v_cndmask_b32 v{120+e}, v{84+4*e}, v{84+4*e+1}, s[{M_H}:{M_H+1}]")
        for e in range(4):
            a(f"v_min_u32 v{120+e}, -2, v{120+e}")
        s.lds_wait(F_CLR, 1, 100)
        a(f"""
        v_lshlrev_b32 v125, 9, v2
        v_lshl_add_u32 v125, v3, 4, v125
        s_mov_b32 exec_hi, 0
        buffer_store_dwordx4 v[120:123], v125, {sr(R_WS,4)}, s{S_P1} offen sc1
        s_mov_b32 exec_hi, -1
        """)
        s.stamp(1, "pro"); s.stamp(3, "w0")
        a(f"s_setprio 0\ns_mov_b32 s{S_CR}, {4*2-3}")
        a(f"""
        v_mul_u32_u24 v116, {8*12288}, v2
        v_lshl_add_u32 v116, v3, 4, v116
        s_lshl_b32 s{S_T0}, s{S_C}, 8
        s_add_u32 s{S_T0}, s{S_T2}, s{S_T0}
        s_add_u32 s{S_T0}, s{S_T0}, 4096
        """)
        s.load_tile(128, 4, 116, R_T, S_T0, 12288, pace="ramp", vt=100)
        s.stamp(4, "w0")
        s.gemv(128, 4, 4, 20, 104, waits=[24, 16, 8, 0])
        s.sel128(20, 56, 60)
        a(f"""
        v_lshrrev_b32 v62, 5, v1
        v_lshlrev_b32 v62, 9, v62
        v_and_b32 v63, 1, v2
        v_lshl_add_u32 v62, v63, 4, v62
        v_lshl_add_u32 v62, v3, 5, v62
        """)
        s.stamp(2, "pro"); s.stamp(5, "w0")
        s.lds_wait(F_ALL, 1, 64)
        a(f"""
        s_lshl_b32 s{S_T0}, s2, 10
        s_add_u32 s{S_T0}, s{S_T0}, {MP}
        buffer_store_dwordx4 v[56:59], v62, {sr(R_WS,4)}, s{S_T0} offen sc1
        """)
        s.lds_set(F_CLR, 2, 64)
        s.stamp(3, "pro"); s.stamp(6, "w0")
        a("s_branch L_helper")

    def ln_scalars(s, mean, var):
        a = s.a
        s.rnd(mean, mean); s.rnd(var, var)
        a(f"v_add_f32 v{var}, {hexf(1e-5)}, v{var}"); s.rnd(var, var)
        a(f"v_sqrt_f32 v{var}, v{var}"); s.rnd(var, var)
        a(f"v_rcp_f32 v{var}, v{var}")

    def w1(s):
        a = s.a
        a.label("L_w1")
        a("s_setprio 3")
        s.srd(R_U, P_X, 4096)
        s.srd(R_T, P_WQ, 8388608)
        a(f"""
        v_lshlrev_b32 v125, 6, v1
        v_lshrrev_b32 v126, 5, v1
        v_lshlrev_b32 v126, 11, v126
        v_and_b32 v127, 31, v1
        v_lshl_add_u32 v126, v127, 3, v126
        s_lshl_b32 s{S_T0}, s{S_G8}, 8
        """)
        for i in range(4):
            a(f"buffer_load_dwordx4 {vr(84+4*i,4)}, v125, {sr(R_U,4)}, 0 offen offset:{16*i}")
        a(f"buffer_load_dwordx2 v[100:101], v126, {sr(R_U,4)}, s{S_T0} offen")
        a(f"""
        v_lshlrev_b32 v120, 16, v2
        v_lshl_add_u32 v120, v3, 4, v120
        s_lshl_b32 s{S_T2}, s{S_G8}, 20
        s_lshl_b32 s{S_T0}, s{S_C}, 8
        s_add_u32 s{S_T2}, s{S_T2}, s{S_T0}
        """)
        s.load_tile(128, 4, 120, R_T, S_T2, 8192, pace="first", vt=102)
        s.stamp(1, "w0")
        a("s_waitcnt vmcnt(32)")
        for i in range(16):
            a(f"v_lshlrev_b32 v{20+2*i}, 16, v{84+i}")
            a(f"v_and_b32 v{21+2*i}, 0xffff0000, v{84+i}")
        a("v_add_f32 v104, v20, v21")
        for i in range(2, 32): a(f"v_add_f32 v104, v104, v{20+i}")
        s.red_row("add", 104, [8, 4, 2, 1]); s.red_16("add", 104, 105)
        a(f"v_mul_f32 v104, {hexf(1/1024)}, v104")
        a("v_mov_b32 v106, 0")
        for i in range(32):
            a(f"v_sub_f32 v105, v{20+i}, v104\nv_fmac_f32 v106, v105, v105")
        s.red_row("add", 106, [8, 4, 2, 1]); s.red_16("add", 106, 105)
        a(f"v_mul_f32 v106, {hexf(1/1024)}, v106")
        s.ln_scalars(104, 106)
        a(f"""
        v_lshlrev_b32 v108, 16, v100
        v_and_b32 v109, 0xffff0000, v100
        v_lshlrev_b32 v110, 16, v101
        v_and_b32 v111, 0xffff0000, v101
        """)
        for q in range(4):
            a(f"v_sub_f32 v{108+q}, v{108+q}, v104"); s.rnd(108+q, 108+q)
            a(f"v_mul_f32 v{108+q}, v{108+q}, v106"); s.rnd(108+q, 108+q)
        a("v_lshlrev_b32 v124, 4, v1")
        s.stamp(2, "w0")
        s.lds_wait(F_ALL, 1, 112)
        s.stamp(1, "pro"); s.stamp(3, "w0")
        a(f"s_lshl_b32 s{S_T2}, s{S_G8}, 13")
        loads = []
        for wh in range(2):
            for hi in range(2):
                a(f"s_add_u32 s{M0+2*wh+hi}, s{S_T2}, {P1P + wh*65536 + hi*4096}")
                for lo in range(4):
                    k = wh * 8 + hi * 4 + lo
                    loads.append(f"buffer_load_dwordx4 {vr(20+4*k,4)}, v124, {sr(R_WS,4)}, s{M0+2*wh+hi} offen offset:{1024*lo} sc1")
        s.poll_all(loads, range(20, 84), 112, sleep=0)
        s.stamp(4, "w0")
        for wh in range(2):
            b0 = 20 + 32 * wh
            for k in range(1, 8):
                for q in range(4): a(f"v_add_f32 v{b0+q}, v{b0+q}, v{b0+4*k+q}")
        for q in range(4):
            s.rnd(20+q, 20+q); s.rnd(52+q, 52+q)
            a(f"v_add_f32 v{52+q}, 1.0, v{52+q}"); s.rnd(52+q, 52+q)
            a(f"v_mul_f32 v{108+q}, v{108+q}, v{52+q}"); s.rnd(108+q, 108+q)
            a(f"v_add_f32 v{108+q}, v{108+q}, v{20+q}")
        a(f"""
        v_cvt_pk_bf16_f32 v112, v108, v109
        v_cvt_pk_bf16_f32 v113, v110, v111
        v_lshlrev_b32 v114, 3, v1
        ds_write_b64 v114, v[112:113] offset:{L_H}
        v_and_b32 v114, 1, v3
        v_lshlrev_b32 v114, 8, v114
        v_lshl_add_u32 v114, v2, 4, v114
        """)
        for t in range(4):
            a(f"ds_read_b128 {vr(4+4*t,4)}, v114 offset:{L_H + 64*t}")
        a("s_waitcnt lgkmcnt(0)")
        s.gemv(128, 4, 4, 20, 104)
        s.sel128(20, 56, 60)
        a(f"""
        v_lshrrev_b32 v62, 5, v1
        v_lshlrev_b32 v62, 17, v62
        v_and_b32 v63, 1, v2
        v_lshl_add_u32 v62, v63, 4, v62
        v_lshl_add_u32 v62, v3, 5, v62
        s_lshl_b32 s{S_T0}, s2, 9
        s_add_u32 s{S_T0}, s{S_T0}, {QP}
        buffer_store_dwordx4 v[56:59], v62, {sr(R_WS,4)}, s{S_T0} offen sc1
        """)
        s.stamp(2, "pro"); s.stamp(5, "w0")
        a(f"""
        s_lshl_b32 s{S_T2}, s{S_G8}, 15
        v_lshrrev_b32 v64, 5, v1
        v_lshlrev_b32 v67, 12, v64
        v_and_b32 v65, 31, v1
        v_lshl_add_u32 v67, v65, 4, v67
        v_mul_u32_u24 v68, 272, v64
        v_lshl_add_u32 v68, v65, 3, v68
        s_waitcnt vmcnt(0)
        """)
        loads = []
        for hp in range(4):
            a(f"s_add_u32 s{M0+hp}, s{S_T2}, {QP + hp*8192}")
            for rho in range(8):
                loads.append(f"buffer_load_dwordx4 {vr(128+32*hp+4*rho,4)}, v67, {sr(R_WS,4)}, s{M0+hp} offen offset:{512*rho} sc1")
        s.poll_all(loads, range(128, 256), 66, sleep=0)
        for hp in range(4):
            b0 = 128 + 32 * hp
            for k in range(1, 8):
                for q in range(4): a(f"v_add_f32 v{b0+q}, v{b0+q}, v{b0+4*k+q}")
            a(f"v_cvt_pk_bf16_f32 v{b0+4}, v{b0}, v{b0+1}\nv_cvt_pk_bf16_f32 v{b0+5}, v{b0+2}, v{b0+3}")
            a(f"ds_write_b64 v68, {vr(b0+4,2)} offset:{L_Q + 544*hp}")
        s.lds_set(F_Q, 1, 64)
        a("s_waitcnt lgkmcnt(0)")
        s.stamp(3, "pro"); s.stamp(6, "w0")
        a("s_setprio 0\ns_branch L_helper")

    def w7(s):
        a = s.a
        a.label("L_w7")
        assert P1P == 0
        a(f"""
        v_mov_b32 v120, -1
        v_mov_b32 v121, -1
        v_mov_b32 v122, -1
        v_mov_b32 v123, -1
        v_lshlrev_b32 v124, 4, v1
        s_mul_i32 s{S_T0}, s2, 5120
        s_add_u32 s{S_T0}, s{S_T0}, {SA}
        s_add_u32 s{S_T1}, s{S_T0}, 4096
        v_lshlrev_b32 v125, 9, v2
        v_lshl_add_u32 v125, v3, 4, v125
        """)
        for i in range(4):
            a(f"buffer_store_dwordx4 v[120:123], v124, {sr(R_WS,4)}, s{S_T0} offen offset:{1024*i} sc1")
        a(f"buffer_store_dwordx4 v[120:123], v124, {sr(R_WS,4)}, s{S_T1} offen sc1")
        a(f"""
        s_mov_b32 exec_hi, 0
        buffer_store_dwordx4 v[120:123], v125, {sr(R_WS,4)}, s{S_P1} offen sc1
        s_mov_b32 exec_hi, -1
        s_waitcnt lgkmcnt(0)
        s_mul_i32 s{S_T2}, s{S_EPO}, 0x9e3779b1
        s_add_u32 s{S_T2}, s{S_T2}, 0x7f4a7c15
        v_mov_b32 v126, s{S_T2}
        v_mov_b32 v127, 0
        s_lshl_b32 s{S_T0}, s2, 2
        s_add_u32 s{S_T0}, s{S_T0}, {FLG}
        s_mov_b32 s{S_T1}, {FLG}
        s_mov_b64 exec, 1
        s_waitcnt vmcnt(0)
        buffer_store_dword v126, v127, {sr(R_WS,4)}, s{S_T0} offen sc1
        s_mov_b64 exec, -1
        """)
        s.lds_set(F_CLR, 1, 100)
        s.stamp(1, "w0")
        L = a.newlabel("FL"); D = a.newlabel("FLD")
        a("s_waitcnt vmcnt(0)\ns_sleep 24")
        a.label(L)
        a(f"buffer_load_dwordx4 v[104:107], v124, {sr(R_WS,4)}, s{S_T1} offen sc1")
        a("s_waitcnt vmcnt(0)")
        for i in range(4): a(f"v_xor_b32 v{104+i}, v{104+i}, v126")
        a(f"v_or3_b32 v104, v104, v105, v106\nv_or_b32 v104, v104, v107\nv_cmp_ne_u32 vcc, 0, v104")
        a(f"s_cbranch_vccz {D}", safe=True)
        a(f"s_sleep 8\ns_sub_u32 s{S_BUD}, s{S_BUD}, 1")
        a(f"s_cbranch_scc0 {L}", safe=True)
        a(f"s_mov_b32 s{S_BUD}, 0")
        a.label(D)
        s.lds_set(F_ALL, 1, 100)
        s.stamp(2, "w0")
        a("s_branch L_stream")

    def vload(s, i, reg):
        u, j = i >> 3, i & 7
        if (j & 3) == 0: s.a(f"s_add_u32 s{S_T1}, s{S_KV}, {(32 * u + 16 * (j >> 2)) * 256}")
        s.a(f"buffer_load_dwordx4 {vr(reg,4)}, v5, {sr(R_V,4)}, s{S_T1} offen offset:{(8*((j>>1)&1) + (j&1))*256} {s.nt}")

    def stream(s):
        a = s.a
        VREG = [48 + 4 * i for i in range(20)] + [160 + 4 * i for i in range(12)]
        SREG = [16, 20] + [128 + 4 * i for i in range(6)]
        Q, WO, O, TMP = 24, 208, 224, 24
        RAW = list(range(40, 48)) + list(range(152, 156)); XF = 156
        s.VREG, s.SREG, s.WO, s.O, s.RAW, s.XF = VREG, SREG, WO, O, RAW, XF
        addr = f"""
        v_lshrrev_b32 v4, 1, v3
        v_lshlrev_b32 v4, 8, v4
        v_lshl_add_u32 v4, v2, 5, v4
        v_and_b32 v5, 1, v3
        v_lshl_add_u32 v4, v5, 4, v4
        v_lshlrev_b32 v5, 9, v2
        v_lshl_add_u32 v5, v3, 4, v5
        s_mov_b32 s{S_STATE}, 0
        """
        a.label("L_stream")
        a(addr)
        a(f"s_lshl_b32 s{S_CR}, s{S_WAVE}, 2\ns_sub_u32 s{S_CR}, s{S_CR}, 3\ns_cmp_eq_u32 s{S_WAVE}, 2\ns_cselect_b32 s{S_CR}, 1, s{S_CR}")
        def kload(t, k):
            if k == 0: a(f"s_add_u32 s{S_T1}, s{S_KV}, {4096*t}")
            a(f"buffer_load_dwordx4 {vr(128+16*t+4*k,4)}, v4, {sr(R_K,4)}, s{S_T1} offen offset:{KOFF[k]} {s.nt}")
        def kdma(t, k):
            if k == 0: a(f"s_add_u32 s{S_T1}, s{S_KV}, {4096*t - 65536}")
            a(f"s_add_u32 m0, s{S_T2}, {1024*(4*t+k) - KOFF[k]}")
            a(f"buffer_load_dwordx4 v4, {sr(R_K,4)}, s{S_T1} offen offset:{KOFF[k]} {s.nt} lds")
        s.credit(6)
        s.stamp(1, "str")
        s.paced([lambda t=t, k=k: kload(t, k) for t in range(8) for k in range(4)], 6, skip_first=True)
        a(f"s_cmp_gt_u32 s{S_WAVE}, 3\ns_cbranch_scc1 L_nodma")
        a(f"s_lshl_b32 s{S_T2}, s{S_WAVE}, 15\ns_add_u32 s{S_T2}, s{S_T2}, {L_KB - 65536}")
        s.paced([lambda t=t, k=k: kdma(t, k) for t in range(8) for k in range(4)], 6, start=32)
        a.label("L_nodma")
        s.stamp(2, "str")
        s.release(6)
        a(f"s_cmp_gt_u32 s{S_WAVE}, 3\ns_cbranch_scc1 L_vtick")
        s.lds_wait(F_Q, 1, 6)
        a(f"s_mov_b32 s{S_STATE}, 1\ns_waitcnt vmcnt(0)\ns_branch L_qk")
        a.label("L_helper")
        a(addr)
        a.label("L_vtick")
        s.ticket(6)
        a(f"""
        s_lshl_b32 s{S_T0}, s{S_WAVE}, 2
        s_add_u32 s{S_T0}, s{S_T0}, {F_K}
        s_cmp_lt_u32 s{S_WAVE}, 2
        s_cselect_b32 s{S_T0}, s{S_T0}, {F_Q}
        v_mov_b32 v9, s{S_T0}
        """)
        a.label("L_waitv")
        a(f"""
        v_mov_b32 v8, 0
        ds_read_b32 v6, v8 offset:{F_TOK}
        ds_read_b32 v7, v9
        s_waitcnt lgkmcnt(0)
        v_readfirstlane_b32 s{S_T0}, v6
        v_readfirstlane_b32 s{S_T1}, v7
        s_cmp_ge_u32 s{S_T0}, s{S_CR}
        s_cbranch_scc1 L_issuev
        s_cmp_gt_u32 s{S_T1}, s{S_STATE}
        s_cbranch_scc0 L_waitv2
        s_mov_b32 s{S_STATE}, 1
        s_waitcnt vmcnt(0)
        s_branch L_hk
        """)
        a.label("L_waitv2")
        a(f"""
        s_sleep 1
        s_sub_u32 s{S_BUD}, s{S_BUD}, 1
        s_cbranch_scc0 L_waitv
        s_mov_b32 s{S_BUD}, 0
        """)
        a.label("L_issuev")
        a(f"s_add_u32 s{S_CR}, s{S_CR}, 1")
        s.stamp(3, "str")
        s.paced([lambda i=i: s.vload(i, VREG[i]) for i in range(20)], 6, skip_first=True)
        s.stamp(4, "str")
        a(f"s_cmp_eq_u32 s{S_STATE}, 1\ns_cbranch_scc0 L_part")
        s.paced([lambda i=i: s.vload(i, VREG[i]) for i in range(20, 32)], 6, start=20, ramp=False)
        a("s_branch L_late2")
        a.label("L_part")
        s.release(6)
        W = a.newlabel("HK")
        a.label(W)
        a(f"""
        ds_read_b32 v6, v9
        s_waitcnt lgkmcnt(0)
        v_readfirstlane_b32 s{S_T0}, v6
        s_cmp_lg_u32 s{S_T0}, 0
        s_cbranch_scc1 L_hk
        s_sleep 2
        s_sub_u32 s{S_BUD}, s{S_BUD}, 1
        s_cbranch_scc0 {W}
        s_mov_b32 s{S_BUD}, 0
        """)
        a.label("L_hk")
        a(f"s_cmp_gt_u32 s{S_WAVE}, 1\ns_cbranch_scc1 L_qk")
        a(f"s_lshl_b32 s{S_T0}, s{S_WAVE}, 15\ns_add_u32 s{S_T0}, s{S_T0}, {L_KB}\nv_lshl_add_u32 v7, v1, 4, s{S_T0}")
        for i in range(32):
            a(f"ds_read_b128 {vr(128+4*i,4)}, v7 offset:{1024*i}")
            if i % 8 == 7: a("s_waitcnt lgkmcnt(0)")
        a.label("L_qk")
        a(f"s_sub_u32 s{S_T0}, s{S_WAVE}, 2\ns_cmp_gt_u32 s{S_T0}, 1\ns_cbranch_scc1 L_qk2")
        a(f"s_lshl_b32 s{S_T0}, s{S_T0}, 2\nv_mov_b32 v7, s{S_T0}\nv_mov_b32 v6, 1\nds_write_b32 v7, v6 offset:{F_K}")
        a.label("L_qk2")
        a(f"""
        v_and_b32 v6, 7, v3
        v_mul_u32_u24 v7, 272, v6
        v_lshl_add_u32 v7, v2, 5, v7
        v_lshrrev_b32 v8, 3, v3
        v_lshl_add_u32 v7, v8, 4, v7
        """)
        for k in range(2):
            a(f"ds_read_b128 {vr(Q+4*k,4)}, v7 offset:{L_Q + 128*k}")
        a("s_waitcnt lgkmcnt(0)")
        def fold(t):
            acc = 32 + 8 * (t & 1)
            for x in range(2):
                for h in range(2):
                    a(f"v_add_f32_dpp v{SREG[t]+2*x+h}, v{acc+4*x+2*h+1}, v{acc+4*x+2*h} row_ror:8 row_mask:0xf bank_mask:0xf")
        for t in range(8):
            acc = 32 + 8 * (t & 1)
            for hh in range(2):
                for x in range(2):
                    c = "0" if hh == 0 else vr(acc+4*x, 4)
                    a(f"v_mfma_f32_16x16x32_bf16 {vr(acc+4*x,4)}, {vr(128+16*t+8*x+4*hh,4)}, {vr(Q+4*hh,4)}, {c}")
            if t: fold(t - 1)
        fold(7)
        allS = [SREG[t] + r for t in range(8) for r in range(4)]
        for x in allS: s.rnd(x, x)
        for x in allS: a(f"v_mul_f32 v{x}, s{S_SCALE}, v{x}")
        for x in allS: s.rnd(x, x)
        a(f"v_max3_f32 v12, v{allS[0]}, v{allS[1]}, v{allS[2]}")
        for i in range(3, 31, 2): a(f"v_max3_f32 v12, v12, v{allS[i]}, v{allS[i+1]}")
        a(f"v_max_f32 v12, v12, v{allS[31]}")
        s.red_16("max", 12, 13); s.red_32("max", 12, 13)
        a(f"v_mul_f32 v14, s{S_LOG2E}, v12")
        for x in allS: a(f"v_fma_f32 v{x}, v{x}, s{S_LOG2E}, -v14")
        for x in allS: a(f"v_exp_f32 v{x}, v{x}")
        a(f"v_add_f32 v13, v{allS[0]}, v{allS[1]}")
        for x in allS[2:]: a(f"v_add_f32 v13, v13, v{x}")
        s.red_16("add", 13, 14); s.red_32("add", 13, 14)
        a(f"""
        s_lshl_b32 s{S_T0}, s{S_WAVE}, 6
        v_lshl_add_u32 v14, v1, 3, s{S_T0}
        v_mov_b32 v15, 1
        v_mov_b32 v7, 0
        s_mov_b64 exec, 0xff
        ds_write_b64 v14, v[12:13] offset:{L_ST}
        s_mov_b64 exec, 1
        ds_add_u32 v7, v15 offset:{F_CNT}
        s_mov_b64 exec, -1
        """)
        s.stamp(4, "pro")
        s.srd(R_T, P_WO, 8388608)
        a(f"""
        v_lshlrev_b32 v8, 12, v2
        v_lshl_add_u32 v8, v3, 3, v8
        s_lshl_b32 s{S_T0}, s{S_G8}, 1
        s_and_b32 s{S_T1}, s{S_C}, 1
        s_add_u32 s{S_T0}, s{S_T0}, s{S_T1}
        s_lshl_b32 s{S_T0}, s{S_T0}, 3
        s_add_u32 s{S_T0}, s{S_T0}, s{S_WAVE}
        s_lshl_b32 s{S_T2}, s{S_T0}, 16
        s_lshr_b32 s{S_T1}, s2, 4
        s_lshl_b32 s{S_T1}, s{S_T1}, 7
        s_add_u32 s{S_T2}, s{S_T2}, s{S_T1}
        """)
        for j in range(8):
            a(f"s_add_u32 s{S_T1}, s{S_T2}, {8*(j&3)*2048}")
            a(f"buffer_load_dwordx2 {vr(WO+2*j,2)}, v8, {sr(R_T,4)}, s{S_T1} offen offset:{(j>>2)*2048} {s.nt}")
        a("v_lshlrev_b32 v13, 2, v0\nv_lshlrev_b32 v10, 1, v0")
        for ai, p in enumerate([P_W1, P_B1, P_W2]):
            s.srd(R_U, p, 7168)
            a(f"s_movk_i32 s{S_T0}, 0x1000")
            a(f"buffer_load_dword v{RAW[4*ai]}, v13, {sr(R_U,4)}, 0 offen")
            a(f"buffer_load_dword v{RAW[4*ai+1]}, v13, {sr(R_U,4)}, 0 offen offset:2048")
            a(f"buffer_load_dword v{RAW[4*ai+2]}, v13, {sr(R_U,4)}, s{S_T0} offen")
            a(f"buffer_load_ushort v{RAW[4*ai+3]}, v10, {sr(R_U,4)}, s{S_T0} offen offset:2048")
        s.srd(R_U, P_X, 4096)
        a(f"""
        v_and_b32 v11, 31, v1
        v_lshlrev_b32 v11, 2, v11
        v_lshrrev_b32 v12, 5, v1
        v_lshl_add_u32 v11, v12, 1, v11
        s_lshl_b32 s{S_T0}, s{S_WAVE}, 7
        v_add_u32 v11, s{S_T0}, v11
        v_lshlrev_b32 v12, 1, v11
        s_and_b32 s{S_T0}, s2, 1
        s_lshl_b32 s{S_T0}, s{S_T0}, 11
        buffer_load_dword v{XF}, v12, {sr(R_U,4)}, s{S_T0} offen
        """)
        s.warm_code(157)
        a(f"s_cmp_eq_u32 s{S_WAVE}, 2\ns_cbranch_scc1 L_w2\ns_cmp_eq_u32 s{S_WAVE}, 3\ns_cbranch_scc1 L_w3")
        a(f"s_cmp_eq_u32 s{S_STATE}, 1\ns_cbranch_scc1 L_waitv")
        s.ticket(6)
        s.paced([lambda i=i: s.vload(i, VREG[i]) for i in range(20, 32)], 6)
        a.label("L_late2")
        s.release(6)
        a("v_and_b32 v6, 7, v3")
        s.stamp(5, "pro"); s.stamp(5, "str")
        a.label("L_pv")
        s.lds_wait(F_F, 1, 12)
        a(f"""
        s_lshl_b32 s{S_T0}, s{S_WAVE}, 5
        v_lshl_add_u32 v14, v6, 2, s{S_T0}
        ds_read_b32 v12, v14 offset:{L_F}
        s_waitcnt lgkmcnt(0)
        """)
        for x in allS: a(f"v_mul_f32 v{x}, v{x}, v12")
        for u in range(4):
            A_, B_ = SREG[2*u], SREG[2*u+1]
            a(f"v_cvt_pk_bf16_f32 v{A_}, v{A_}, v{A_+1}\nv_cvt_pk_bf16_f32 v{A_+1}, v{A_+2}, v{A_+3}")
            a(f"v_cvt_pk_bf16_f32 v{A_+2}, v{B_}, v{B_+1}\nv_cvt_pk_bf16_f32 v{A_+3}, v{B_+2}, v{B_+3}")
        k = 0
        for u in range(4):
            a(f"s_waitcnt vmcnt({24-8*u})")
            ld = VREG[8*u:8*u+8]
            for e in range(8):
                d = TMP + 4 * (k & 3); k += 1
                s.perm_op(d, ld, e)
                c = "0" if u == 0 else vr(O+4*e, 4)
                a(f"v_mfma_f32_16x16x32_bf16 {vr(O+4*e,4)}, {vr(d,4)}, {vr(SREG[2*u],4)}, {c}")
        a(f"""
        s_mul_i32 s{S_T0}, s{S_WAVE}, {SLAB}
        v_lshlrev_b32 v12, 7, v2
        v_lshl_add_u32 v12, v3, 4, v12
        v_add_u32 v12, s{S_T0}, v12
        s_mov_b32 exec_lo, 0x00ff00ff
        s_mov_b32 exec_hi, 0x00ff00ff
        """)
        for e in range(8):
            a(f"ds_write_b128 v12, {vr(O+4*e,4)} offset:{L_SLAB + 528*e}")
        a("s_mov_b64 exec, -1")
        a.label("L_tail")

    def w2(s):
        a = s.a
        a.label("L_w2")
        s.lds_wait(F_CNT, 8, 12)
        T = 224
        a(f"""
        v_lshlrev_b32 v14, 3, v1
        ds_read_b64 v[12:13], v14 offset:{L_ST}
        s_waitcnt lgkmcnt(0)
        v_mov_b32 v{T}, v12
        """)
        s.red_row("max", T, [8]); s.red_16("max", T, T+2); s.red_32("max", T, T+2)
        a(f"""
        v_sub_f32 v{T+1}, v12, v{T}
        v_mul_f32 v{T+1}, s{S_LOG2E}, v{T+1}
        v_exp_f32 v{T+1}, v{T+1}
        v_mul_f32 v{T+1}, v{T+1}, v13
        """)
        s.red_row("add", T+1, [8]); s.red_16("add", T+1, T+2); s.red_32("add", T+1, T+2)
        a(f"""
        v_min_u32 v{T}, -2, v{T}
        v_min_u32 v{T+1}, -2, v{T+1}
        s_lshl_b32 s{S_T2}, s{S_G8}, 11
        s_add_u32 s{S_T2}, s{S_T2}, {ML}
        s_lshl_b32 s{S_T0}, s{S_C}, 6
        s_add_u32 s{S_T0}, s{S_T0}, s{S_T2}
        s_mov_b64 exec, 0xff
        buffer_store_dwordx2 {vr(T,2)}, v14, {sr(R_WS,4)}, s{S_T0} offen sc1
        s_mov_b64 exec, -1
        """)
        G_ = T + 4
        a("s_waitcnt vmcnt(0)")
        s.poll_all([f"buffer_load_dwordx2 {vr(G_+2*i,2)}, v14, {sr(R_WS,4)}, s{S_T2} offen offset:{512*i} sc1" for i in range(4)],
                   range(G_, G_ + 8), T + 2, sleep=12)
        a(f"v_max3_f32 v{T}, v{G_}, v{G_+2}, v{G_+4}\nv_max_f32 v{T}, v{T}, v{G_+6}")
        s.red_row("max", T, [8]); s.red_16("max", T, T+2); s.red_32("max", T, T+2)
        for i in range(4):
            a(f"v_sub_f32 v{G_+2*i}, v{G_+2*i}, v{T}\nv_mul_f32 v{G_+2*i}, s{S_LOG2E}, v{G_+2*i}\nv_exp_f32 v{G_+2*i}, v{G_+2*i}")
        a(f"v_mul_f32 v{T+1}, v{G_}, v{G_+1}")
        for i in range(1, 4): a(f"v_fmac_f32 v{T+1}, v{G_+2*i}, v{G_+2*i+1}")
        s.red_row("add", T+1, [8]); s.red_16("add", T+1, T+2); s.red_32("add", T+1, T+2)
        a(f"""
        v_rcp_f32 v{T+1}, v{T+1}
        v_sub_f32 v12, v12, v{T}
        v_mul_f32 v12, s{S_LOG2E}, v12
        v_exp_f32 v12, v12
        v_mul_f32 v12, v12, v{T+1}
        v_lshlrev_b32 v14, 2, v1
        ds_write_b32 v14, v12 offset:{L_F}
        """)
        s.lds_set(F_F, 1, T)
        s.stamp(1, "pro")
        a("s_branch L_vtick")

    def w3(s):
        a = s.a
        a.label("L_w3")
        T = 224
        s.lds_wait(F_CLR, 2, 12)
        a(f"""
        v_lshrrev_b32 v12, 2, v1
        v_lshlrev_b32 v12, 9, v12
        v_and_b32 v13, 3, v1
        v_lshl_add_u32 v12, v13, 4, v12
        s_lshl_b32 s{S_T2}, s{S_C}, 13
        s_lshl_b32 s{S_T0}, s{S_G8}, 6
        s_add_u32 s{S_T2}, s{S_T2}, s{S_T0}
        s_add_u32 s{S_T2}, s{S_T2}, {MP}
        """)
        s.poll_all([f"buffer_load_dwordx4 {vr(T,4)}, v12, {sr(R_WS,4)}, s{S_T2} offen sc1"], range(T, T+4), T + 4, sleep=16)
        for q in range(4):
            s.red_row("add", T+q, [8]); s.red_16("add", T+q, T+4); s.red_32("add", T+q, T+4)
            s.rnd(T+q, T+q)
        a(f"""
        v_bfe_u32 v12, v1, 2, 1
        v_lshlrev_b32 v12, 14, v12
        v_lshl_add_u32 v12, v13, 4, v12
        s_lshl_b32 s{S_T0}, s2, 6
        s_add_u32 s{S_T0}, s{S_T0}, {MF}
        s_mov_b64 exec, 0xff
        buffer_store_dwordx4 {vr(T,4)}, v12, {sr(R_WS,4)}, s{S_T0} offen sc1
        s_mov_b64 exec, -1
        """)
        s.stamp(1, "pro")
        a(f"""
        v_lshlrev_b32 v12, 4, v1
        s_and_b32 s{S_T2}, s2, 1
        s_lshl_b32 s{S_T2}, s{S_T2}, 14
        s_waitcnt vmcnt(0)
        """)
        a("s_sleep 32")
        for half in range(2):
            loads = []
            for hi in range(2):
                a(f"s_add_u32 s{M0+hi}, s{S_T2}, {MF + 4096*(2*half+hi)}")
                for lo in range(4):
                    loads.append(f"buffer_load_dwordx4 {vr(T+16*hi+4*lo,4)}, v12, {sr(R_WS,4)}, s{M0+hi} offen offset:{1024*lo} sc1")
            s.poll_all(loads, range(T, T+32), 13, sleep=32)
            for k in range(8):
                a(f"ds_write_b128 v12, {vr(T+4*k,4)} offset:{L_MOD + 1024*(8*half+k)}")
            a("s_waitcnt lgkmcnt(0)")
        s.stamp(2, "pro")
        a("s_branch L_vtick")

    def ln_reduce(s, x0, x1, area, t):
        a = s.a
        a(f"""
        v_readfirstlane_b32 s{S_T0}, v{x0}
        v_subrev_f32 v{t+2}, s{S_T0}, v{x0}
        v_subrev_f32 v{t+3}, s{S_T0}, v{x1}
        v_add_f32 v{t}, v{t+2}, v{t+3}
        v_mul_f32 v{t+1}, v{t+2}, v{t+2}
        v_fmac_f32 v{t+1}, v{t+3}, v{t+3}
        """)
        for k in [8, 4, 2, 1]:
            s.red_row("add", t, [k]); s.red_row("add", t+1, [k])
        a(f"""
        v_permlane16_swap_b32 v{t}, v{t+1}
        v_add_f32 v{t}, v{t}, v{t+1}
        """)
        s.red_32("add", t, t+1)
        a(f"""
        v_mov_b32 v{t+1}, v{t}
        v_permlane16_swap_b32 v{t}, v{t+1}
        """)
        a(f"""
        v_mul_f32 v{t+2}, {hexf(1/128)}, v{t}
        v_fma_f32 v{t+1}, -v{t+2}, v{t}, v{t+1}
        v_add_f32 v{t}, s{S_T0}, v{t+2}
        s_lshl_b32 s{S_T1}, s{S_WAVE}, 3
        v_mov_b32 v{t+2}, s{S_T1}
        s_mov_b64 exec, 1
        ds_write_b64 v{t+2}, {vr(t,2)} offset:{area}
        s_mov_b64 exec, -1
        v_and_b32 v{t+2}, 7, v1
        v_lshlrev_b32 v{t+2}, 3, v{t+2}
        s_waitcnt lgkmcnt(0)
        s_barrier
        ds_read_b64 {vr(t,2)}, v{t+2} offset:{area}
        """)
    def ln_finish(s, t):
        a = s.a
        dpp8 = ["row_half_mirror", "quad_perm:[2,3,0,1]", "quad_perm:[1,0,3,2]"]
        a(f"v_mov_b32 v{t+2}, v{t}")
        for d in dpp8: a(f"v_add_f32_dpp v{t+2}, v{t+2}, v{t+2} {d} row_mask:0xf bank_mask:0xf")
        a(f"""
        v_mul_f32 v{t+2}, {hexf(0.125)}, v{t+2}
        v_sub_f32 v{t}, v{t}, v{t+2}
        v_mul_f32 v{t}, v{t}, v{t}
        v_fmamk_f32 v{t+1}, v{t}, {hexf(128.0)}, v{t+1}
        """)
        for d in dpp8: a(f"v_add_f32_dpp v{t+1}, v{t+1}, v{t+1} {d} row_mask:0xf bank_mask:0xf")
        a(f"v_mul_f32 v{t+1}, {hexf(1/1024)}, v{t+1}\nv_mov_b32 v{t}, v{t+2}")
        s.ln_scalars(t, t+1)

    def tail(s):
        a = s.a
        WO, RAW, XF = s.WO, s.RAW, s.XF
        a("s_waitcnt lgkmcnt(0)\ns_barrier")
        s.stamp(6, "pro"); s.stamp(1, "tail"); s.stamp(6, "str"); s.stamp(1, "dbg")
        a(f"s_cmp_ge_u32 s{S_WAVE}, 4\ns_cbranch_scc1 L_nopub")
        a(f"""
        v_and_b32 v12, 7, v0
        v_bfe_u32 v13, v0, 3, 2
        v_lshrrev_b32 v14, 5, v0
        v_mul_u32_u24 v15, 528, v12
        v_lshl_add_u32 v15, v13, 7, v15
        v_lshl_add_u32 v15, v14, 4, v15
        """)
        for w in range(8):
            a(f"ds_read_b128 {vr(48+4*w,4)}, v15 offset:{L_SLAB + SLAB*w}")
        a(f"""
        v_lshlrev_b32 v16, 14, v14
        v_lshl_add_u32 v16, v13, 12, v16
        v_lshl_add_u32 v16, v12, 3, v16
        s_and_b32 s{S_T0}, s{S_G8}, 3
        s_lshl_b32 s{S_T0}, s{S_T0}, 17
        s_lshr_b32 s{S_T1}, s{S_G8}, 2
        s_lshl_b32 s{S_T1}, s{S_T1}, 11
        s_add_u32 s{S_T0}, s{S_T0}, s{S_T1}
        s_lshl_b32 s{S_T1}, s{S_C}, 6
        s_add_u32 s{S_T0}, s{S_T0}, s{S_T1}
        s_add_u32 s{S_T0}, s{S_T0}, {H1}
        s_waitcnt lgkmcnt(0)
        """)
        for (x, y) in [(0,1),(2,3),(4,5),(6,7),(0,2),(4,6),(0,4)]:
            for h in range(2):
                a(f"v_pk_add_f32 {vr(48+4*x+2*h,2)}, {vr(48+4*x+2*h,2)}, {vr(48+4*y+2*h,2)}")
        a(f"""
        v_cvt_pk_bf16_f32 v52, v48, v49
        v_cvt_pk_bf16_f32 v53, v50, v51
        v_min_u32 v52, -2, v52
        v_min_u32 v53, -2, v53
        buffer_store_dwordx2 v[52:53], v16, {sr(R_WS,4)}, s{S_T0} offen sc1
        s_waitcnt vmcnt(1)
        s_branch L_pubdone
        """)
        a.label("L_nopub")
        a("s_waitcnt vmcnt(0)")
        a.label("L_pubdone")
        WB = 24
        ld = [WO + 2 * j for j in range(8)]
        for e in range(4): s.perm_op(WB + 4 * e, ld, e)
        a(f"""
        v_and_b32 v12, 1, v3
        v_lshlrev_b32 v12, 11, v12
        v_lshrrev_b32 v13, 1, v3
        v_lshl_add_u32 v12, v13, 6, v12
        v_lshl_add_u32 v12, v2, 4, v12
        s_lshl_b32 s{S_T0}, s{S_G8}, 1
        s_and_b32 s{S_T1}, s{S_C}, 1
        s_add_u32 s{S_T0}, s{S_T0}, s{S_T1}
        s_lshl_b32 s{S_T2}, s{S_T0}, 3
        s_add_u32 s{S_T2}, s{S_T2}, s{S_WAVE}
        s_lshl_b32 s{S_T2}, s{S_T2}, 12
        s_add_u32 s{S_T2}, s{S_T2}, {H1}
        """)
        CO = 160
        a(f"s_mov_b32 s{S_T0}, {hexf(K1)}\nv_mov_b32 v20, {hexf(K0)}")
        for k in range(7):
            for ai, d in enumerate([16, 17, 18]):
                src = RAW[4*ai + k//2]
                if k & 1: a(f"v_and_b32 v{d}, 0xffff0000, v{src}")
                else: a(f"v_lshlrev_b32 v{d}, 16, v{src}")
            c = CO + 6 * k
            a(f"""
            v_mul_f32 v19, v17, v17
            v_mul_f32 v19, s{S_T0}, v19
            v_add_f32 v{c}, v20, v19
            v_mul_f32 v{c}, v{c}, v17
            v_fmamk_f32 v{c+1}, v19, {hexf(3.0)}, v20
            v_mul_f32 v{c+1}, v{c+1}, v16
            v_mul_f32 v19, v16, v16
            v_mul_f32 v19, s{S_T0}, v19
            v_mul_f32 v{c+3}, v19, v16
            v_mul_f32 v19, v19, v17
            v_mul_f32 v{c+2}, {hexf(3.0)}, v19
            v_mul_f32 v{c+4}, v17, v18
            v_mul_f32 v{c+5}, v16, v18
            """)
        a(f"""
        v_lshlrev_b32 v13, 2, v11
        ds_read_b64 v[40:41], v13 offset:{L_MOD}
        ds_read_b64 v[42:43], v13 offset:{L_MOD+4096}
        ds_read_b64 v[44:45], v13 offset:{L_MOD+8192}
        v_lshlrev_b32 v46, 16, v{XF}
        v_and_b32 v47, 0xffff0000, v{XF}
        s_waitcnt lgkmcnt(0)
        v_add_f32 v44, 1.0, v44
        v_add_f32 v45, 1.0, v45
        """)
        s.rnd(44, 44); s.rnd(45, 45)
        s.poll_masked([(f"buffer_load_dwordx4 {vr(48+4*t,4)}, v12, {sr(R_WS,4)}, s{S_T2} offen offset:{512*t} sc1", range(48+4*t, 52+4*t)) for t in range(4)], 16)
        s.stamp(2, "tail")
        ACC = 64
        for t in range(4):
            for e in range(4):
                c = "0" if t == 0 else vr(ACC+4*e, 4)
                a(f"v_mfma_f32_16x16x32_bf16 {vr(ACC+4*e,4)}, {vr(48+4*t,4)}, {vr(WB+4*e,4)}, {c}")
        a(f"""
        s_lshl_b32 s{S_T0}, s{S_WAVE}, 10
        v_lshl_add_u32 v12, v1, 4, s{S_T0}
        """)
        for e in range(4):
            a(f"v_pk_add_f32 {vr(ACC+4*e,2)}, {vr(ACC+4*e,2)}, {vr(ACC+4*e+2,2)}")
        for e in range(4):
            a(f"v_permlane32_swap_b32 v{ACC+4*e}, v{ACC+4*e+1}")
        for e in range(4):
            a(f"v_add_f32 v{80+e}, v{ACC+4*e}, v{ACC+4*e+1}")
        a(f"""
        ds_write_b128 v12, v[80:83] offset:{L_S2}
        s_waitcnt lgkmcnt(0)
        s_barrier
        s_cmp_lg_u32 s{S_WAVE}, 0
        s_cbranch_scc1 L_nopub2
        """)
        for w in range(8):
            a(f"ds_read_b128 {vr(48+4*w,4)}, v12 offset:{L_S2 + 1024*w}")
        a(f"""
        v_lshrrev_b32 v13, 5, v1
        v_lshlrev_b32 v13, 16, v13
        v_lshl_add_u32 v13, v3, 4, v13
        s_lshl_b32 s{S_T0}, s{S_G8}, 1
        s_and_b32 s{S_T1}, s{S_C}, 1
        s_add_u32 s{S_T0}, s{S_T0}, s{S_T1}
        s_lshl_b32 s{S_T0}, s{S_T0}, 12
        s_lshr_b32 s{S_T1}, s2, 4
        s_lshl_b32 s{S_T1}, s{S_T1}, 8
        s_add_u32 s{S_T0}, s{S_T0}, s{S_T1}
        s_add_u32 s{S_T0}, s{S_T0}, {AP}
        s_waitcnt lgkmcnt(0)
        """)
        for (x, y) in [(0,1),(2,3),(4,5),(6,7),(0,2),(4,6),(0,4)]:
            for h in range(2):
                a(f"v_pk_add_f32 {vr(48+4*x+2*h,2)}, {vr(48+4*x+2*h,2)}, {vr(48+4*y+2*h,2)}")
        for q in range(4): a(f"v_mov_b32 v{52+q}, v{48+q}")
        for q in range(4): a(f"v_permlane16_swap_b32 v{48+q}, v{52+q}")
        for q in range(4): a(f"v_add_f32 v{48+q}, v{48+q}, v{52+q}")
        for q in range(4): a(f"v_min_u32 v{48+q}, -2, v{48+q}")
        a(f"""
        s_mov_b32 exec_lo, 0x0000ffff
        s_mov_b32 exec_hi, 0x0000ffff
        buffer_store_dwordx4 v[48:51], v13, {sr(R_WS,4)}, s{S_T0} offen sc1
        s_mov_b64 exec, -1
        s_nop 1
        """)
        a.label("L_nopub2")
        a("s_barrier")
        s.stamp(3, "tail")
        a(f"""
        v_lshrrev_b32 v12, 5, v1
        v_lshlrev_b32 v12, 15, v12
        v_and_b32 v13, 31, v1
        v_lshl_add_u32 v12, v13, 4, v12
        s_and_b32 s{S_T0}, s2, 1
        s_lshl_b32 s{S_T0}, s{S_T0}, 16
        s_lshl_b32 s{S_T1}, s{S_WAVE}, 9
        s_add_u32 s{S_T0}, s{S_T0}, s{S_T1}
        s_add_u32 s{S_T0}, s{S_T0}, {AP}
        """)
        for i in range(8):
            a(f"v_add_u32 v{112+i}, {4096*i}, v12")
        s.poll_masked([(f"buffer_load_dwordx4 {vr(64+4*i,4)}, v{112+i}, {sr(R_WS,4)}, s{S_T0} offen sc1", range(64+4*i, 68+4*i)) for i in range(8)], 16)
        s.stamp(4, "tail")
        for (x, y) in [(0,1),(2,3),(4,5),(6,7),(0,2),(4,6),(0,4)]:
            for h in range(2):
                a(f"v_pk_add_f32 {vr(64+4*x+2*h,2)}, {vr(64+4*x+2*h,2)}, {vr(64+4*y+2*h,2)}")
        a(f"""
        v_permlane32_swap_b32 v64, v66
        v_permlane32_swap_b32 v65, v67
        v_add_f32 v64, v64, v66
        v_add_f32 v65, v65, v67
        """)
        for q in range(2): s.rnd(64+q, 64+q)
        for q in range(2): a(f"v_mul_f32 v{64+q}, v{64+q}, v{40+q}")
        for q in range(2): s.rnd(64+q, 64+q)
        for q in range(2): a(f"v_add_f32 v{64+q}, v{64+q}, v{46+q}")
        for q in range(2): s.rnd(64+q, 64+q)
        a(f"v_lshlrev_b32 v13, 2, v11\nv_add_u32 v13, {L_HL}, v13")
        a(f"ds_write_b64 v13, v[64:65] offset:{L_X2-L_HL}")
        s.ln_reduce(64, 65, L_RED, 68)
        a("s_waitcnt lgkmcnt(0)")
        s.ln_finish(68)
        for q in range(2): a(f"v_sub_f32 v{66+q}, v{64+q}, v68")
        for q in range(2): s.rnd(66+q, 66+q)
        for q in range(2): a(f"v_mul_f32 v{66+q}, v{66+q}, v69")
        for q in range(2): s.rnd(66+q, 66+q)
        for q in range(2): a(f"v_mul_f32 v{66+q}, v{66+q}, v{44+q}")
        for q in range(2): s.rnd(66+q, 66+q)
        for q in range(2): a(f"v_add_f32 v{66+q}, v{66+q}, v{42+q}")
        for q in range(2): s.rnd(66+q, 66+q)
        a("ds_write_b64 v13, v[66:67]")
        s.ln_reduce(66, 67, L_RED + 64, 68)
        a(f"""
        s_lshr_b32 s{S_T0}, s2, 1
        s_lshl_b32 s{S_T0}, s{S_T0}, 5
        s_add_u32 s{S_T2}, s{S_T0}, {L_HL}
        v_mov_b32 v14, s{S_T2}
        ds_read_b128 v[80:83], v14
        ds_read_b128 v[84:87], v14 offset:16
        s_waitcnt lgkmcnt(0)
        """)
        s.ln_finish(68)
        for q in range(8): a(f"v_sub_f32 v{80+q}, v{80+q}, v68")
        for q in range(8): s.rnd(80+q, 80+q)
        for q in range(8): a(f"v_mul_f32 v{80+q}, v{80+q}, v69")
        for q in range(8): s.rnd(80+q, 80+q)
        for p in range(4): a(f"v_pk_mul_f32 {vr(88+2*p,2)}, {vr(80+2*p,2)}, {vr(80+2*p,2)}")
        for p in range(4): a(f"v_pk_mul_f32 {vr(96+2*p,2)}, {vr(88+2*p,2)}, {vr(80+2*p,2)}")
        s.stamp(5, "tail")
        a("v_mov_b32 v104, 1.0\nv_mov_b32 v105, 1.0")
        Y = 48; Z = 112; GG = 120
        for k in range(7):
            c = 160 + 6 * k
            for p in range(4):
                a(f"v_pk_fma_f32 {vr(Z+2*p,2)}, {vr(c,2)}, {vr(80+2*p,2)}, {vr(c,2)} op_sel:[1,0,0] op_sel_hi:[1,1,0]")
            for p in range(4):
                a(f"v_pk_fma_f32 {vr(Z+2*p,2)}, {vr(c+2,2)}, {vr(88+2*p,2)}, {vr(Z+2*p,2)} op_sel:[0,0,0] op_sel_hi:[0,1,1]")
            for p in range(4):
                a(f"v_pk_fma_f32 {vr(Z+2*p,2)}, {vr(c+2,2)}, {vr(96+2*p,2)}, {vr(Z+2*p,2)} op_sel:[1,0,0] op_sel_hi:[1,1,1]")
            for q in range(8): a(f"v_exp_f32 v{Z+q}, v{Z+q}")
            for p in range(4):
                a(f"v_pk_fma_f32 {vr(GG+2*p,2)}, {vr(c+4,2)}, {vr(80+2*p,2)}, {vr(c+4,2)} op_sel:[1,0,0] op_sel_hi:[1,1,0]")
            for p in range(4):
                a(f"v_pk_add_f32 {vr(Z+2*p,2)}, {vr(Z+2*p,2)}, v[104:105]")
            for q in range(8): a(f"v_rcp_f32 v{Z+q}, v{Z+q}")
            for p in range(4):
                if k == 0: a(f"v_pk_mul_f32 {vr(Y+2*p,2)}, {vr(GG+2*p,2)}, {vr(Z+2*p,2)}")
                else: a(f"v_pk_fma_f32 {vr(Y+2*p,2)}, {vr(GG+2*p,2)}, {vr(Z+2*p,2)}, {vr(Y+2*p,2)}")
        s.stamp(6, "tail")
        for q in range(4): a(f"v_permlane32_swap_b32 v{Y+q}, v{Y+4+q}")
        for q in range(4): a(f"v_add_f32 v{Y+q}, v{Y+q}, v{Y+4+q}")
        for q in range(2): a(f"v_permlane16_swap_b32 v{Y+q}, v{Y+2+q}")
        for q in range(2): a(f"v_add_f32 v{Y+q}, v{Y+q}, v{Y+2+q}")
        for k in [8, 4, 2, 1]:
            for q in range(2): s.red_row("add", Y+q, [k])
        a(f"""
        s_lshl_b32 s{S_T0}, s{S_WAVE}, 5
        v_lshl_add_u32 v12, v2, 3, s{S_T0}
        s_mov_b32 exec_lo, 0x00010001
        s_mov_b32 exec_hi, 0x00010001
        ds_write_b64 v12, {vr(Y,2)} offset:{L_RED+128}
        s_mov_b64 exec, -1
        s_waitcnt lgkmcnt(0)
        s_barrier
        s_cmp_lg_u32 s{S_WAVE}, 0
        s_cbranch_scc1 L_fin
        v_lshlrev_b32 v12, 2, v1
        ds_read_b32 v48, v12 offset:{L_RED+128}
        v_and_b32 v13, 7, v1
        v_lshl_add_u32 v13, v13, 2, s{S_T2}
        ds_read_b32 v49, v13 offset:{L_X2-L_HL}
        v_subrev_u32 v13, {L_HL - L_MOD - 12288}, v13
        ds_read_b32 v50, v13
        s_lshl_b32 s{S_B2}, s{S_B2}, 16
        s_waitcnt lgkmcnt(0)
        """)
        s.red_row("add", 48, [8]); s.red_16("add", 48, 51); s.red_32("add", 48, 51)
        s.rnd(48, 48)
        a(f"v_add_f32 v48, s{S_B2}, v48"); s.rnd(48, 48)
        a("v_mul_f32 v48, v48, v50"); s.rnd(48, 48)
        a("v_add_f32 v48, v48, v49")
        a("v_cvt_pk_bf16_f32 v48, v48, v48")
        s.srd(R_U, P_OUT, 4096)
        a(f"""
        v_lshlrev_b32 v12, 1, v1
        s_and_b32 s{S_T0}, s2, 1
        s_lshl_b32 s{S_T0}, s{S_T0}, 11
        s_lshr_b32 s{S_T1}, s2, 1
        s_lshl_b32 s{S_T1}, s{S_T1}, 4
        s_add_u32 s{S_T0}, s{S_T0}, s{S_T1}
        s_mov_b64 exec, 0xff
        buffer_store_short v48, v12, {sr(R_U,4)}, s{S_T0} offen
        s_cmp_lg_u32 s2, 0
        s_cbranch_scc1 L_noepo
        s_mul_i32 s{S_T2}, s{S_EPO}, 0x9e3779b1
        s_add_u32 s{S_T2}, s{S_T2}, 0x7f4a7c15
        s_mov_b64 exec, 1
        v_mov_b32 v49, s{S_T2}
        v_mov_b32 v50, {EPO}
        buffer_store_dword v49, v50, {sr(R_WS,4)}, 0 offen
        L_noepo:
        s_mov_b64 exec, -1
        """)
        a.label("L_fin")
        if s.stamps == "dbg":
            a(f"s_memrealtime s[{M0}:{M0+1}]\ns_waitcnt lgkmcnt(0)")
            a(f"s_cmp_lg_u32 s{S_WAVE}, 0\ns_cbranch_scc1 L_end")
            a(f"s_not_b32 s{S_T0}, s{S_ST}\nv_mov_b32 v48, s{M0}\nv_mov_b32 v49, s{S_T0}\nv_mov_b32 v50, s{S_ST+2}\nv_mov_b32 v51, s{S_ST}\nv_mov_b32 v12, 0\ns_mov_b64 exec, 1")
            a(f"global_atomic_umax v12, v48, s[{P_DBG}:{P_DBG+1}]")
            a(f"global_atomic_umax v12, v49, s[{P_DBG}:{P_DBG+1}] offset:4")
            a(f"global_atomic_umax v12, v50, s[{P_DBG}:{P_DBG+1}] offset:8")
            a(f"global_atomic_umax v12, v51, s[{P_DBG}:{P_DBG+1}] offset:12")
        elif s.stamps:
            a(f"s_memrealtime s[{M0}:{M0+1}]\ns_waitcnt lgkmcnt(0)")
            for i in range(14): a(f"v_mov_b32 v{48+i}, s{S_ST+i}")
            a(f"v_mov_b32 v62, s{M0}\nv_mov_b32 v63, s{M0+1}")
            a(f"""
            s_lshl_b32 s{S_T0}, s2, 3
            s_add_u32 s{S_T0}, s{S_T0}, s{S_WAVE}
            s_lshl_b32 s{S_T0}, s{S_T0}, 6
            s_add_u32 s{S_T0}, s{S_T0}, {STAMP}
            v_mov_b32 v12, 0
            s_mov_b64 exec, 1
            """)
            for i in range(4):
                a(f"buffer_store_dwordx4 {vr(48+4*i,4)}, v12, {sr(R_WS,4)}, s{S_T0} offen offset:{16*i}")
        a("s_endpgm")

    def build(s):
        a = s.a
        if s.stamps:
            pass
        s.prologue()
        if s.stamps:
            pass
        s.w0(); s.w7(); s.w1()
        s.stream()
        s.tail()
        s.w2(); s.w3()
        a.label("L_end")
        a("s_endpgm")
        ref = open("adaLN_cond__gqa_block_cached__mixer_token_mlp__decode.s.ref").read()
        head = ref.split("; Override launch")[0]
        out = head + f"; @launch grid=(256,1,1) block=(512,1,1) lds={LDS_BYTES}\n"
        out += f""".amdgcn_target "amdgcn-amd-amdhsa--gfx950"
.text
.globl {NAME}
.p2align 8
.type {NAME},@function
{NAME}:
"""
        out += a.text()
        out += f""".section .rodata,"a"
.p2align 6
.amdhsa_kernel {NAME}
  .amdhsa_next_free_vgpr 256
  .amdhsa_next_free_sgpr 102
  .amdhsa_accum_offset 256
  .amdhsa_group_segment_fixed_size 0
  .amdhsa_kernarg_size 120
  .amdhsa_user_sgpr_count 2
  .amdhsa_user_sgpr_kernarg_segment_ptr 1
  .amdhsa_system_sgpr_workgroup_id_x 1
  .amdhsa_float_denorm_mode_32 3
.end_amdhsa_kernel
"""
        return out

if __name__ == "__main__":
    import argparse
    ap = argparse.ArgumentParser()
    ap.add_argument("-o", default="k.s"); ap.add_argument("--stamps", default=None); ap.add_argument("--nt", default="nt"); ap.add_argument("--depth", type=int, default=28)
    args = ap.parse_args()
    g = G(stamps=args.stamps, nt=args.nt, depth=args.depth)
    open(args.o, "w").write(g.build())
    print("nops inserted:", g.a.nops, "lines:", len(g.a.out))
```

```python
import sys, math
from asmlib import Asm, hexf, f2u

NAME = "adaLN_cond__gqa_block_cached__mixer_token_mlp__decode_kernel"
HDR = open("adaLN_cond__gqa_block_cached__mixer_token_mlp__decode.s.ref").read().split("; Override launch")[0] if len(sys.argv) > 99 else ""

P1P = 0x000000
SA  = 0x100000
QP  = SA + 0x000000
MP  = SA + 0x040000
H1  = SA + 0x080000
AP  = SA + 0x100000
MF  = SA + 0x120000
ML  = SA + 0x128000
FLG = 0x040000
EPO = 0x050000
STAMP = 0x8000000
F_TOK, F_Q, F_CNT, F_F, F_ALL, F_CLR, F_K, F_NEXT = 0, 4, 8, 12, 16, 20, 24, 32
L_H   = 0x100
L_Q   = 0x400
L_ST  = 0x1000
L_F   = 0x1200
L_RED = 0x1400
L_SLAB = 0x1800
SLAB = 4224
L_MOD = 0x9C00
L_S2  = 0xDC00
L_HL  = 0x10000
L_X2  = 0x11000
L_KB  = 0x12000
LDS_BYTES = 0x22000

KOFF = [0, 128, 2048, 2176]
LOG2E = 1.4426950408889634
SCALE = 128 ** -0.5
K0 = -2.0 * math.sqrt(2.0 / math.pi) * LOG2E
K1 = K0 * 0.044715

def vr(a, n=1): return f"v[{a}:{a+n-1}]" if n > 1 else f"v{a}"
def sr(a, n=1): return f"s[{a}:{a+n-1}]" if n > 1 else f"s{a}"

S_WG, S_WAVE, S_G8, S_C = 2, 3, 5, 6
S_T0, S_T1, S_T2 = 7, 8, 9
S_BUD = 10
S_SELLO, S_SELHI = 11, 12
S_KV = 13
S_LOG2E, S_SCALE = 14, 15
P_X, P_K, P_V, P_WQ, P_WO, P_W1, P_B1, P_W2, P_B2, P_C, P_WM, P_OUT, P_DBG, P_WS = 16,18,20,22,24,28,30,32,34,36,38,40,42,44
S_B2 = 46
S_STATE = 47
S_P1 = 4
S_CR = 27
S_EPO = 26
R_K, R_V, R_WS, R_T, R_U = 48, 52, 56, 60, 64
M_H, M_B = 68, 70
M0 = 72
S_ST = 88

class G:
    def __init__(s, stamps=False, nt="nt", depth=20):
        s.a = Asm(); s.stamps = stamps; s.nt = nt; s.nst = 0; s.D = depth
    def srd(s, r, p, size):
        s.a(f"s_mov_b32 s{r}, s{p}\ns_mov_b32 s{r+1}, s{p+1}\ns_mov_b32 s{r+2}, {size}\ns_mov_b32 s{r+3}, 0x20000")
    def stamp(s, i, grp=None):
        if s.stamps and (grp is None or grp == s.stamps):
            assert i < 7
            s.a(f"s_memrealtime s[{S_ST+2*i}:{S_ST+2*i+1}]")
    def rnd(s, d, x):
        s.a(f"v_cvt_pk_bf16_f32 v{d}, 0, v{x}")
    def lds_wait(s, addr, val, vt, sleep=2, pad=True):
        a = s.a; L = a.newlabel("LW"); D = a.newlabel("LWD")
        a(f"v_mov_b32 v{vt+1}, 0")
        a.label(L)
        a(f"ds_read_b32 v{vt}, v{vt+1} offset:{addr}")
        a("s_waitcnt lgkmcnt(0)")
        a(f"v_readfirstlane_b32 s{S_T0}, v{vt}")
        a(f"s_cmp_ge_u32 s{S_T0}, {val}")
        a(f"s_cbranch_scc1 {D}", safe=True)
        a(f"s_sleep {sleep}")
        a(f"s_sub_u32 s{S_BUD}, s{S_BUD}, 1")
        a(f"s_cbranch_scc0 {L}", safe=True)
        a(f"s_mov_b32 s{S_BUD}, 0")
        a.label(D)
        if pad: a("s_nop 4")
    def lds_set(s, addr, val, vt):
        a = s.a
        a(f"v_mov_b32 v{vt}, {val}\nv_mov_b32 v{vt+1}, 0")
        a(f"ds_write_b32 v{vt+1}, v{vt} offset:{addr}")
    def ticket(s, vt):
        a = s.a
        a(f"""
        v_mov_b32 v{vt}, 1
        v_mov_b32 v{vt+1}, 0
        s_mov_b64 exec, 1
        ds_add_rtn_u32 v{vt}, v{vt+1}, v{vt} offset:{F_NEXT}
        s_mov_b64 exec, -1
        s_waitcnt lgkmcnt(0)
        v_readfirstlane_b32 s{S_CR}, v{vt}
        s_lshl_b32 s{S_CR}, s{S_CR}, 2
        s_add_u32 s{S_CR}, s{S_CR}, {4*8-3}
        """)
    def credit(s, vt):
        s.lds_wait(F_TOK, f"s{S_CR}", vt, sleep=1, pad=False)
        s.a(f"s_add_u32 s{S_CR}, s{S_CR}, 1")
    def paced(s, loads, vt, ramp=True, start=0, skip_first=False):
        st = s.D // 4
        for i, l in enumerate(loads):
            k = start + i
            if ramp and k % st == 0 and k < 4 * st and not (skip_first and k == 0): s.credit(vt)
            if k >= s.D: s.a(f"s_waitcnt vmcnt({s.D-1})")
            l()
        if ramp:
            n = start + len(loads)
            for k in range(0, 4 * st, st):
                if k >= n: s.credit(vt)
    def release(s, vt):
        a = s.a; st = s.D // 4
        a(f"v_mov_b32 v{vt}, 1\nv_mov_b32 v{vt+1}, 0\ns_mov_b64 exec, 1")
        for i in range(4):
            if i: a(f"s_waitcnt vmcnt({s.D - st*i})")
            a(f"ds_add_u32 v{vt+1}, v{vt} offset:{F_TOK}")
        a("s_mov_b64 exec, -1")
    def umax(s, d, regs):
        a = s.a; regs = list(regs)
        if len(regs) == 1: a(f"v_mov_b32 v{d}, v{regs[0]}"); return
        if len(regs) == 2: a(f"v_max_u32 v{d}, v{regs[0]}, v{regs[1]}"); return
        a(f"v_max3_u32 v{d}, v{regs[0]}, v{regs[1]}, v{regs[2]}"); regs = regs[3:]
        while len(regs) >= 2:
            a(f"v_max3_u32 v{d}, v{d}, v{regs[0]}, v{regs[1]}"); regs = regs[2:]
        if regs: a(f"v_max_u32 v{d}, v{d}, v{regs[0]}")
    def poll_all(s, loads, regs, vt, sleep=4):
        a = s.a; L = a.newlabel("PA"); D = a.newlabel("PAD")
        a.label(L)
        for l in loads: a(l)
        a("s_waitcnt vmcnt(0)")
        s.umax(vt, regs)
        a(f"v_cmp_eq_u32 vcc, -1, v{vt}")
        a(f"s_cbranch_vccz {D}", safe=True)
        if sleep: a(f"s_sleep {sleep}")
        a(f"s_sub_u32 s{S_BUD}, s{S_BUD}, 1")
        a(f"s_cbranch_scc0 {L}", safe=True)
        a(f"s_mov_b32 s{S_BUD}, 0")
        a.label(D)
        a("s_nop 4")
    def poll_masked(s, loads, vt):
        a = s.a; L = a.newlabel("PM"); D = a.newlabel("PMD")
        n = len(loads); assert n <= 8
        for l, _ in loads: a(l)
        a.label(L)
        a("s_waitcnt vmcnt(0)")
        for i, (l, regs) in enumerate(loads):
            s.umax(vt + i, regs)
        for i in range(n):
            a(f"v_cmp_eq_u32 s[{M0+2*i}:{M0+2*i+1}], -1, v{vt+i}")
        a(f"s_or_b64 vcc, s[{M0}:{M0+1}], s[{M0+2}:{M0+3}]")
        for i in range(2, n):
            a(f"s_or_b64 vcc, vcc, s[{M0+2*i}:{M0+2*i+1}]")
        a(f"s_cbranch_scc0 {D}", safe=True)
        for i, (l, _) in enumerate(loads):
            K = a.newlabel("PK")
            a(f"s_mov_b64 exec, s[{M0+2*i}:{M0+2*i+1}]")
            a(f"s_cbranch_execz {K}", safe=True)
            a(l)
            a.label(K)
        a("s_mov_b64 exec, -1")
        a(f"s_sub_u32 s{S_BUD}, s{S_BUD}, 1")
        a(f"s_cbranch_scc0 {L}", safe=True)
        a(f"s_mov_b32 s{S_BUD}, 0")
        a("s_waitcnt vmcnt(0)")
        a.label(D)
    def red_row(s, op, x, steps):
        for k in steps:
            s.a(f"v_{op}_f32_dpp v{x}, v{x}, v{x} row_ror:{k} row_mask:0xf bank_mask:0xf")
    def red_16(s, op, x, t):
        s.a(f"v_mov_b32 v{t}, v{x}\nv_permlane16_swap_b32 v{x}, v{t}\nv_{op}_f32 v{x}, v{x}, v{t}")
    def red_32(s, op, x, t):
        s.a(f"v_mov_b32 v{t}, v{x}\nv_permlane32_swap_b32 v{x}, v{t}\nv_{op}_f32 v{x}, v{x}, v{t}")

    def warm_code(s, vd):
        a = s.a; L = a.newlabel("PC")
        a(f"s_getpc_b64 s[{M0}:{M0+1}]")
        a.label(L)
        a(f"s_sub_u32 s{M0}, s{M0}, {L}-{NAME}")
        a(f"s_subb_u32 s{M0+1}, s{M0+1}, 0")
        a(f"v_lshlrev_b32 v{vd}, 6, v0")
        a(f"v_min_u32 v{vd}, L_end-{NAME}, v{vd}")
        a(f"global_load_dword v{vd}, v{vd}, s[{M0}:{M0+1}]")

    def silu_operand(s, base, t):
        a = s.a
        for i in range(16):
            r = base + i
            a(f"v_lshlrev_b32 v{t}, 16, v{r}")
            a(f"v_and_b32 v{t+1}, 0xffff0000, v{r}")
            a(f"v_mul_f32 v{t+2}, s{S_LOG2E}, v{t}")
            a(f"v_mul_f32 v{t+3}, s{S_LOG2E}, v{t+1}")
            a(f"v_exp_f32 v{t+2}, -v{t+2}")
            a(f"v_exp_f32 v{t+3}, -v{t+3}")
            a(f"v_add_f32 v{t+2}, 1.0, v{t+2}")
            a(f"v_add_f32 v{t+3}, 1.0, v{t+3}")
            a(f"v_rcp_f32 v{t+2}, v{t+2}")
            a(f"v_rcp_f32 v{t+3}, v{t+3}")
            a(f"v_mul_f32 v{t}, v{t}, v{t+2}")
            a(f"v_mul_f32 v{t+1}, v{t+1}, v{t+3}")
            a(f"v_cvt_pk_bf16_f32 v{r}, v{t}, v{t+1}")
    def load_c(s, base, vt):
        a = s.a
        s.srd(R_U, P_C, 4096)
        a(f"v_and_b32 v{vt}, 1, v3\nv_lshlrev_b32 v{vt}, 11, v{vt}\nv_lshl_add_u32 v{vt}, v2, 4, v{vt}")
        a(f"s_lshl_b32 s{S_T0}, s{S_G8}, 8")
        for t in range(4):
            a(f"buffer_load_dwordx4 {vr(base+4*t,4)}, v{vt}, {sr(R_U,4)}, s{S_T0} offen offset:{64*t}")
    def load_tile(s, base, w, voff, srd, sbase, stride, pace=None, vt=None):
        a = s.a
        sfx = {2: "x2", 4: "x4"}[w]
        for t in range(1, 4): a(f"v_add_u32 v{voff+t}, {32*t*stride}, v{voff}")
        for j in range(8): a(f"s_add_u32 s{M0+j}, s{sbase}, {j*stride}")
        L = []
        for t in range(4):
            for j in range(8):
                k = 8 * t + j
                L.append(lambda k=k, t=t, j=j: a(f"buffer_load_dword{sfx} {vr(base+w*k,w)}, v{voff+t}, {sr(srd,4)}, s{M0+j} offen {s.nt}"))
        if pace is None:
            for l in L: l()
        else:
            s.paced(L, vt, ramp=(pace == "ramp"))
            s.release(vt)
    def perm_op(s, dst, ld, e):
        sel = S_SELHI if e & 1 else S_SELLO
        for jj in range(4):
            s.a(f"v_perm_b32 v{dst+jj}, v{ld[2*jj+1]+(e>>1)}, v{ld[2*jj]+(e>>1)}, s{sel}")
    def gemv(s, tile, w, aop, acc, tmp, waits=None):
        a = s.a; ne = 2 * w; k = 0
        for t in range(4):
            if waits is not None: a(f"s_waitcnt vmcnt({waits[t]})")
            ld = [tile + w * (8 * t + j) for j in range(8)]
            for e in range(ne):
                d = tmp + 4 * (k & 3); k += 1
                s.perm_op(d, ld, e)
                c = "0" if t == 0 else vr(acc + 4 * e, 4)
                a(f"v_mfma_f32_16x16x32_bf16 {vr(acc+4*e,4)}, {vr(aop+4*t,4)}, {vr(d,4)}, {c}")
    def sel128(s, acc, out, t):
        a = s.a
        for q in range(4):
            a(f"v_cndmask_b32 v{t}, v{acc+4*q}, v{acc+4*(4+q)}, s[{M_H}:{M_H+1}]")
            a(f"v_cndmask_b32 v{t+1}, v{acc+4*q+1}, v{acc+4*(4+q)+1}, s[{M_H}:{M_H+1}]")
            a(f"v_cndmask_b32 v{out+q}, v{t}, v{t+1}, s[{M_B}:{M_B+1}]")
            a(f"v_min_u32 v{out+q}, -2, v{out+q}")

    def prologue(s):
        a = s.a
        a(f"""
        s_cmp_ge_u32 s2, 256
        s_cbranch_scc1 L_end
        s_load_dwordx16 s[16:31], s[0:1], 0
        s_load_dwordx8 s[32:39], s[0:1], 64
        s_load_dwordx4 s[40:43], s[0:1], 96
        s_load_dwordx2 s[44:45], s[0:1], 112
        """)
        s.warm_code(47)
        s.stamp(0)
        a(f"""
        v_lshrrev_b32 v4, 6, v0
        v_and_b32 v1, 63, v0
        v_readfirstlane_b32 s{S_WAVE}, v4
        v_lshrrev_b32 v2, 4, v1
        v_and_b32 v3, 15, v1
        v_mov_b32 v4, 0
        v_lshlrev_b32 v5, 2, v1
        ds_write_b32 v5, v4
        s_and_b32 s{S_G8}, s2, 7
        s_lshr_b32 s{S_C}, s2, 3
        s_mov_b32 s{S_BUD}, 400000
        s_mov_b32 s{S_SELLO}, 0x05040100
        s_mov_b32 s{S_SELHI}, 0x07060302
        s_mov_b32 s{S_LOG2E}, {hexf(LOG2E)}
        s_mov_b32 s{S_SCALE}, {hexf(SCALE)}
        s_mov_b32 s{M_H}, 0xffff0000
        s_mov_b32 s{M_H+1}, 0xffff0000
        s_mov_b32 s{M_B}, 0
        s_mov_b32 s{M_B+1}, -1
        s_lshl_b32 s{S_KV}, s{S_G8}, 23
        s_lshl_b32 s{S_T0}, s{S_C}, 18
        s_add_u32 s{S_KV}, s{S_KV}, s{S_T0}
        s_lshl_b32 s{S_T0}, s{S_WAVE}, 15
        s_add_u32 s{S_KV}, s{S_KV}, s{S_T0}
        s_waitcnt lgkmcnt(0)
        """)
        s.srd(R_K, P_K, 0x4000000); s.srd(R_V, P_V, 0x4000000); s.srd(R_WS, P_WS, 0x10000000)
        s.srd(R_T, P_WM, 12582912); s.srd(R_U, P_C, 4096)
        a(f"""
        s_load_dword s{S_B2}, s[{P_B2}:{P_B2+1}], 0
        s_load_dword s{S_EPO}, s[{P_WS}:{P_WS+1}], {EPO}
        s_lshr_b32 s{S_P1}, s{S_C}, 1
        s_lshl_b32 s{S_P1}, s{S_P1}, 3
        s_add_u32 s{S_P1}, s{S_P1}, s{S_G8}
        s_lshl_b32 s{S_P1}, s{S_P1}, 10
        s_and_b32 s{S_T2}, s{S_C}, 1
        s_lshl_b32 s{S_T2}, s{S_T2}, 8
        s_add_u32 s{S_P1}, s{S_P1}, s{S_T2}
        s_barrier
        s_cmp_eq_u32 s{S_WAVE}, 1
        s_cbranch_scc1 L_w1
        s_cmp_eq_u32 s{S_WAVE}, 7
        s_cbranch_scc1 L_w7
        s_cmp_gt_u32 s{S_WAVE}, 1
        s_cbranch_scc1 L_stream
        """)

    def w0(s):
        a = s.a
        a.label("L_w0")
        a("s_setprio 3")
        s.load_c(4, 99)
        a(f"""
        v_mul_u32_u24 v100, {8*12288}, v2
        v_lshl_add_u32 v100, v3, 3, v100
        s_mul_i32 s{S_T2}, s{S_G8}, {128*12288}
        s_lshl_b32 s{S_T0}, s{S_C}, 7
        s_add_u32 s{S_T0}, s{S_T2}, s{S_T0}
        """)
        s.load_tile(20, 2, 100, R_T, S_T0, 12288)
        s.stamp(1, "w0")
        a("s_waitcnt vmcnt(32)")
        s.silu_operand(4, 104)
        s.gemv(20, 2, 4, 84, 104, waits=[24, 16, 8, 0])
        for e in range(4):
            a(f"v_cndmask_b32 v{120+e}, v{84+4*e}, v{84+4*e+1}, s[{M_H}:{M_H+1}]")
        for e in range(4):
            a(f"v_min_u32 v{120+e}, -2, v{120+e}")
        s.lds_wait(F_CLR, 1, 100)
        a(f"""
        v_lshlrev_b32 v125, 9, v2
        v_lshl_add_u32 v125, v3, 4, v125
        s_mov_b32 exec_hi, 0
        buffer_store_dwordx4 v[120:123], v125, {sr(R_WS,4)}, s{S_P1} offen sc1
        s_mov_b32 exec_hi, -1
        """)
        s.stamp(1, "pro"); s.stamp(3, "w0")
        a(f"s_setprio 0\ns_mov_b32 s{S_CR}, {4*2-3}")
        a(f"""
        v_mul_u32_u24 v116, {8*12288}, v2
        v_lshl_add_u32 v116, v3, 4, v116
        s_lshl_b32 s{S_T0}, s{S_C}, 8
        s_add_u32 s{S_T0}, s{S_T2}, s{S_T0}
        s_add_u32 s{S_T0}, s{S_T0}, 4096
        """)
        s.load_tile(128, 4, 116, R_T, S_T0, 12288, pace="ramp", vt=100)
        s.stamp(4, "w0")
        s.gemv(128, 4, 4, 20, 104, waits=[24, 16, 8, 0])
        s.sel128(20, 56, 60)
        a(f"""
        v_lshrrev_b32 v62, 5, v1
        v_lshlrev_b32 v62, 9, v62
        v_and_b32 v63, 1, v2
        v_lshl_add_u32 v62, v63, 4, v62
        v_lshl_add_u32 v62, v3, 5, v62
        """)
        s.stamp(2, "pro"); s.stamp(5, "w0")
        s.lds_wait(F_ALL, 1, 64)
        a(f"""
        s_lshl_b32 s{S_T0}, s2, 10
        s_add_u32 s{S_T0}, s{S_T0}, {MP}
        buffer_store_dwordx4 v[56:59], v62, {sr(R_WS,4)}, s{S_T0} offen sc1
        """)
        s.lds_set(F_CLR, 2, 64)
        s.stamp(3, "pro"); s.stamp(6, "w0")
        a("s_branch L_helper")

    def ln_scalars(s, mean, var):
        a = s.a
        s.rnd(mean, mean); s.rnd(var, var)
        a(f"v_add_f32 v{var}, {hexf(1e-5)}, v{var}"); s.rnd(var, var)
        a(f"v_sqrt_f32 v{var}, v{var}"); s.rnd(var, var)
        a(f"v_rcp_f32 v{var}, v{var}")

    def w1(s):
        a = s.a
        a.label("L_w1")
        a("s_setprio 3")
        s.srd(R_U, P_X, 4096)
        s.srd(R_T, P_WQ, 8388608)
        a(f"""
        v_lshlrev_b32 v125, 6, v1
        v_lshrrev_b32 v126, 5, v1
        v_lshlrev_b32 v126, 11, v126
        v_and_b32 v127, 31, v1
        v_lshl_add_u32 v126, v127, 3, v126
        s_lshl_b32 s{S_T0}, s{S_G8}, 8
        """)
        for i in range(4):
            a(f"buffer_load_dwordx4 {vr(84+4*i,4)}, v125, {sr(R_U,4)}, 0 offen offset:{16*i}")
        a(f"buffer_load_dwordx2 v[100:101], v126, {sr(R_U,4)}, s{S_T0} offen")
        a(f"""
        v_lshlrev_b32 v120, 16, v2
        v_lshl_add_u32 v120, v3, 4, v120
        s_lshl_b32 s{S_T2}, s{S_G8}, 20
        s_lshl_b32 s{S_T0}, s{S_C}, 8
        s_add_u32 s{S_T2}, s{S_T2}, s{S_T0}
        """)
        s.load_tile(128, 4, 120, R_T, S_T2, 8192, pace="first", vt=102)
        s.stamp(1, "w0")
        a("s_waitcnt vmcnt(32)")
        for i in range(16):
            a(f"v_lshlrev_b32 v{20+2*i}, 16, v{84+i}")
            a(f"v_and_b32 v{21+2*i}, 0xffff0000, v{84+i}")
        a("v_add_f32 v104, v20, v21")
        for i in range(2, 32): a(f"v_add_f32 v104, v104, v{20+i}")
        s.red_row("add", 104, [8, 4, 2, 1]); s.red_16("add", 104, 105)
        a(f"v_mul_f32 v104, {hexf(1/1024)}, v104")
        a("v_mov_b32 v106, 0")
        for i in range(32):
            a(f"v_sub_f32 v105, v{20+i}, v104\nv_fmac_f32 v106, v105, v105")
        s.red_row("add", 106, [8, 4, 2, 1]); s.red_16("add", 106, 105)
        a(f"v_mul_f32 v106, {hexf(1/1024)}, v106")
        s.ln_scalars(104, 106)
        a(f"""
        v_lshlrev_b32 v108, 16, v100
        v_and_b32 v109, 0xffff0000, v100
        v_lshlrev_b32 v110, 16, v101
        v_and_b32 v111, 0xffff0000, v101
        """)
        for q in range(4):
            a(f"v_sub_f32 v{108+q}, v{108+q}, v104"); s.rnd(108+q, 108+q)
            a(f"v_mul_f32 v{108+q}, v{108+q}, v106"); s.rnd(108+q, 108+q)
        a("v_lshlrev_b32 v124, 4, v1")
        s.stamp(2, "w0")
        s.lds_wait(F_ALL, 1, 112)
        s.stamp(1, "pro"); s.stamp(3, "w0")
        a(f"s_lshl_b32 s{S_T2}, s{S_G8}, 13")
        loads = []
        for wh in range(2):
            for hi in range(2):
                a(f"s_add_u32 s{M0+2*wh+hi}, s{S_T2}, {P1P + wh*65536 + hi*4096}")
                for lo in range(4):
                    k = wh * 8 + hi * 4 + lo
                    loads.append(f"buffer_load_dwordx4 {vr(20+4*k,4)}, v124, {sr(R_WS,4)}, s{M0+2*wh+hi} offen offset:{1024*lo} sc1")
        s.poll_all(loads, range(20, 84), 112, sleep=0)
        s.stamp(4, "w0")
        for wh in range(2):
            b0 = 20 + 32 * wh
            for k in range(1, 8):
                for q in range(4): a(f"v_add_f32 v{b0+q}, v{b0+q}, v{b0+4*k+q}")
        for q in range(4):
            s.rnd(20+q, 20+q); s.rnd(52+q, 52+q)
            a(f"v_add_f32 v{52+q}, 1.0, v{52+q}"); s.rnd(52+q, 52+q)
            a(f"v_mul_f32 v{108+q}, v{108+q}, v{52+q}"); s.rnd(108+q, 108+q)
            a(f"v_add_f32 v{108+q}, v{108+q}, v{20+q}")
        a(f"""
        v_cvt_pk_bf16_f32 v112, v108, v109
        v_cvt_pk_bf16_f32 v113, v110, v111
        v_lshlrev_b32 v114, 3, v1
        ds_write_b64 v114, v[112:113] offset:{L_H}
        v_and_b32 v114, 1, v3
        v_lshlrev_b32 v114, 8, v114
        v_lshl_add_u32 v114, v2, 4, v114
        """)
        for t in range(4):
            a(f"ds_read_b128 {vr(4+4*t,4)}, v114 offset:{L_H + 64*t}")
        a("s_waitcnt lgkmcnt(0)")
        s.gemv(128, 4, 4, 20, 104)
        s.sel128(20, 56, 60)
        a(f"""
        v_lshrrev_b32 v62, 5, v1
        v_lshlrev_b32 v62, 17, v62
        v_and_b32 v63, 1, v2
        v_lshl_add_u32 v62, v63, 4, v62
        v_lshl_add_u32 v62, v3, 5, v62
        s_lshl_b32 s{S_T0}, s2, 9
        s_add_u32 s{S_T0}, s{S_T0}, {QP}
        buffer_store_dwordx4 v[56:59], v62, {sr(R_WS,4)}, s{S_T0} offen sc1
        """)
        s.stamp(2, "pro"); s.stamp(5, "w0")
        a(f"""
        s_lshl_b32 s{S_T2}, s{S_G8}, 15
        v_lshrrev_b32 v64, 5, v1
        v_lshlrev_b32 v67, 12, v64
        v_and_b32 v65, 31, v1
        v_lshl_add_u32 v67, v65, 4, v67
        v_mul_u32_u24 v68, 272, v64
        v_lshl_add_u32 v68, v65, 3, v68
        s_waitcnt vmcnt(0)
        """)
        loads = []
        for hp in range(4):
            a(f"s_add_u32 s{M0+hp}, s{S_T2}, {QP + hp*8192}")
            for rho in range(8):
                loads.append(f"buffer_load_dwordx4 {vr(128+32*hp+4*rho,4)}, v67, {sr(R_WS,4)}, s{M0+hp} offen offset:{512*rho} sc1")
        s.poll_all(loads, range(128, 256), 66, sleep=0)
        for hp in range(4):
            b0 = 128 + 32 * hp
            for k in range(1, 8):
                for q in range(4): a(f"v_add_f32 v{b0+q}, v{b0+q}, v{b0+4*k+q}")
            a(f"v_cvt_pk_bf16_f32 v{b0+4}, v{b0}, v{b0+1}\nv_cvt_pk_bf16_f32 v{b0+5}, v{b0+2}, v{b0+3}")
            a(f"ds_write_b64 v68, {vr(b0+4,2)} offset:{L_Q + 544*hp}")
        s.lds_set(F_Q, 1, 64)
        a("s_waitcnt lgkmcnt(0)")
        s.stamp(3, "pro"); s.stamp(6, "w0")
        a("s_setprio 0\ns_branch L_helper")

    def w7(s):
        a = s.a
        a.label("L_w7")
        assert P1P == 0
        a(f"""
        v_mov_b32 v120, -1
        v_mov_b32 v121, -1
        v_mov_b32 v122, -1
        v_mov_b32 v123, -1
        v_lshlrev_b32 v124, 4, v1
        s_mul_i32 s{S_T0}, s2, 5120
        s_add_u32 s{S_T0}, s{S_T0}, {SA}
        s_add_u32 s{S_T1}, s{S_T0}, 4096
        v_lshlrev_b32 v125, 9, v2
        v_lshl_add_u32 v125, v3, 4, v125
        """)
        for i in range(4):
            a(f"buffer_store_dwordx4 v[120:123], v124, {sr(R_WS,4)}, s{S_T0} offen offset:{1024*i} sc1")
        a(f"buffer_store_dwordx4 v[120:123], v124, {sr(R_WS,4)}, s{S_T1} offen sc1")
        a(f"""
        s_mov_b32 exec_hi, 0
        buffer_store_dwordx4 v[120:123], v125, {sr(R_WS,4)}, s{S_P1} offen sc1
        s_mov_b32 exec_hi, -1
        s_waitcnt lgkmcnt(0)
        s_mul_i32 s{S_T2}, s{S_EPO}, 0x9e3779b1
        s_add_u32 s{S_T2}, s{S_T2}, 0x7f4a7c15
        v_mov_b32 v126, s{S_T2}
        v_mov_b32 v127, 0
        s_lshl_b32 s{S_T0}, s2, 2
        s_add_u32 s{S_T0}, s{S_T0}, {FLG}
        s_mov_b32 s{S_T1}, {FLG}
        s_mov_b64 exec, 1
        s_waitcnt vmcnt(0)
        buffer_store_dword v126, v127, {sr(R_WS,4)}, s{S_T0} offen sc1
        s_mov_b64 exec, -1
        """)
        s.lds_set(F_CLR, 1, 100)
        s.stamp(1, "w0")
        L = a.newlabel("FL"); D = a.newlabel("FLD")
        a("s_waitcnt vmcnt(0)\ns_sleep 24")
        a.label(L)
        a(f"buffer_load_dwordx4 v[104:107], v124, {sr(R_WS,4)}, s{S_T1} offen sc1")
        a("s_waitcnt vmcnt(0)")
        for i in range(4): a(f"v_xor_b32 v{104+i}, v{104+i}, v126")
        a(f"v_or3_b32 v104, v104, v105, v106\nv_or_b32 v104, v104, v107\nv_cmp_ne_u32 vcc, 0, v104")
        a(f"s_cbranch_vccz {D}", safe=True)
        a(f"s_sleep 8\ns_sub_u32 s{S_BUD}, s{S_BUD}, 1")
        a(f"s_cbranch_scc0 {L}", safe=True)
        a(f"s_mov_b32 s{S_BUD}, 0")
        a.label(D)
        s.lds_set(F_ALL, 1, 100)
        s.stamp(2, "w0")
        a("s_branch L_stream")

    def vload(s, i, reg):
        u, j = i >> 3, i & 7
        if (j & 3) == 0: s.a(f"s_add_u32 s{S_T1}, s{S_KV}, {(32 * u + 16 * (j >> 2)) * 256}")
        s.a(f"buffer_load_dwordx4 {vr(reg,4)}, v5, {sr(R_V,4)}, s{S_T1} offen offset:{(8*((j>>1)&1) + (j&1))*256} {s.nt}")

    def stream(s):
        a = s.a
        VREG = [48 + 4 * i for i in range(20)] + [160 + 4 * i for i in range(12)]
        SREG = [16, 20] + [128 + 4 * i for i in range(6)]
        Q, WO, O, TMP = 24, 208, 224, 24
        RAW = list(range(40, 48)) + list(range(152, 156)); XF = 156
        s.VREG, s.SREG, s.WO, s.O, s.RAW, s.XF = VREG, SREG, WO, O, RAW, XF
        addr = f"""
        v_lshrrev_b32 v4, 1, v3
        v_lshlrev_b32 v4, 8, v4
        v_lshl_add_u32 v4, v2, 5, v4
        v_and_b32 v5, 1, v3
        v_lshl_add_u32 v4, v5, 4, v4
        v_lshlrev_b32 v5, 9, v2
        v_lshl_add_u32 v5, v3, 4, v5
        s_mov_b32 s{S_STATE}, 0
        """
        a.label("L_stream")
        a(addr)
        a(f"s_lshl_b32 s{S_CR}, s{S_WAVE}, 2\ns_sub_u32 s{S_CR}, s{S_CR}, 3\ns_cmp_eq_u32 s{S_WAVE}, 2\ns_cselect_b32 s{S_CR}, 1, s{S_CR}")
        def kload(t, k):
            if k == 0: a(f"s_add_u32 s{S_T1}, s{S_KV}, {4096*t}")
            a(f"buffer_load_dwordx4 {vr(128+16*t+4*k,4)}, v4, {sr(R_K,4)}, s{S_T1} offen offset:{KOFF[k]} {s.nt}")
        def kdma(t, k):
            if k == 0: a(f"s_add_u32 s{S_T1}, s{S_KV}, {4096*t - 65536}")
            a(f"s_add_u32 m0, s{S_T2}, {1024*(4*t+k) - KOFF[k]}")
            a(f"buffer_load_dwordx4 v4, {sr(R_K,4)}, s{S_T1} offen offset:{KOFF[k]} {s.nt} lds")
        s.credit(6)
        s.stamp(1, "str")
        s.paced([lambda t=t, k=k: kload(t, k) for t in range(8) for k in range(4)], 6, skip_first=True)
        a(f"s_cmp_gt_u32 s{S_WAVE}, 3\ns_cbranch_scc1 L_nodma")
        a(f"s_lshl_b32 s{S_T2}, s{S_WAVE}, 15\ns_add_u32 s{S_T2}, s{S_T2}, {L_KB - 65536}")
        s.paced([lambda t=t, k=k: kdma(t, k) for t in range(8) for k in range(4)], 6, start=32)
        a.label("L_nodma")
        s.stamp(2, "str")
        s.release(6)
        a(f"s_cmp_gt_u32 s{S_WAVE}, 3\ns_cbranch_scc1 L_vtick")
        s.lds_wait(F_Q, 1, 6)
        a(f"s_mov_b32 s{S_STATE}, 1\ns_waitcnt vmcnt(0)\ns_branch L_qk")
        a.label("L_helper")
        a(addr)
        a.label("L_vtick")
        s.ticket(6)
        a(f"""
        s_lshl_b32 s{S_T0}, s{S_WAVE}, 2
        s_add_u32 s{S_T0}, s{S_T0}, {F_K}
        s_cmp_lt_u32 s{S_WAVE}, 2
        s_cselect_b32 s{S_T0}, s{S_T0}, {F_Q}
        v_mov_b32 v9, s{S_T0}
        """)
        a.label("L_waitv")
        a(f"""
        v_mov_b32 v8, 0
        ds_read_b32 v6, v8 offset:{F_TOK}
        ds_read_b32 v7, v9
        s_waitcnt lgkmcnt(0)
        v_readfirstlane_b32 s{S_T0}, v6
        v_readfirstlane_b32 s{S_T1}, v7
        s_cmp_ge_u32 s{S_T0}, s{S_CR}
        s_cbranch_scc1 L_issuev
        s_cmp_gt_u32 s{S_T1}, s{S_STATE}
        s_cbranch_scc0 L_waitv2
        s_mov_b32 s{S_STATE}, 1
        s_waitcnt vmcnt(0)
        s_branch L_hk
        """)
        a.label("L_waitv2")
        a(f"""
        s_sleep 1
        s_sub_u32 s{S_BUD}, s{S_BUD}, 1
        s_cbranch_scc0 L_waitv
        s_mov_b32 s{S_BUD}, 0
        """)
        a.label("L_issuev")
        a(f"s_add_u32 s{S_CR}, s{S_CR}, 1")
        s.stamp(3, "str")
        s.paced([lambda i=i: s.vload(i, VREG[i]) for i in range(20)], 6, skip_first=True)
        s.stamp(4, "str")
        a(f"s_cmp_eq_u32 s{S_STATE}, 1\ns_cbranch_scc0 L_part")
        s.paced([lambda i=i: s.vload(i, VREG[i]) for i in range(20, 32)], 6, start=20, ramp=False)
        a("s_branch L_late2")
        a.label("L_part")
        s.release(6)
        W = a.newlabel("HK")
        a.label(W)
        a(f"""
        ds_read_b32 v6, v9
        s_waitcnt lgkmcnt(0)
        v_readfirstlane_b32 s{S_T0}, v6
        s_cmp_lg_u32 s{S_T0}, 0
        s_cbranch_scc1 L_hk
        s_sleep 2
        s_sub_u32 s{S_BUD}, s{S_BUD}, 1
        s_cbranch_scc0 {W}
        s_mov_b32 s{S_BUD}, 0
        """)
        a.label("L_hk")
        a(f"s_cmp_gt_u32 s{S_WAVE}, 1\ns_cbranch_scc1 L_qk")
        a(f"s_lshl_b32 s{S_T0}, s{S_WAVE}, 15\ns_add_u32 s{S_T0}, s{S_T0}, {L_KB}\nv_lshl_add_u32 v7, v1, 4, s{S_T0}")
        for i in range(32):
            a(f"ds_read_b128 {vr(128+4*i,4)}, v7 offset:{1024*i}")
            if i % 8 == 7: a("s_waitcnt lgkmcnt(0)")
        a.label("L_qk")
        a(f"s_sub_u32 s{S_T0}, s{S_WAVE}, 2\ns_cmp_gt_u32 s{S_T0}, 1\ns_cbranch_scc1 L_qk2")
        a(f"s_lshl_b32 s{S_T0}, s{S_T0}, 2\nv_mov_b32 v7, s{S_T0}\nv_mov_b32 v6, 1\nds_write_b32 v7, v6 offset:{F_K}")
        a.label("L_qk2")
        a(f"""
        v_and_b32 v6, 7, v3
        v_mul_u32_u24 v7, 272, v6
        v_lshl_add_u32 v7, v2, 5, v7
        v_lshrrev_b32 v8, 3, v3
        v_lshl_add_u32 v7, v8, 4, v7
        """)
        for k in range(2):
            a(f"ds_read_b128 {vr(Q+4*k,4)}, v7 offset:{L_Q + 128*k}")
        a("s_waitcnt lgkmcnt(0)")
        def fold(t):
            acc = 32 + 8 * (t & 1)
            for x in range(2):
                for h in range(2):
                    a(f"v_add_f32_dpp v{SREG[t]+2*x+h}, v{acc+4*x+2*h+1}, v{acc+4*x+2*h} row_ror:8 row_mask:0xf bank_mask:0xf")
        for t in range(8):
            acc = 32 + 8 * (t & 1)
            for hh in range(2):
                for x in range(2):
                    c = "0" if hh == 0 else vr(acc+4*x, 4)
                    a(f"v_mfma_f32_16x16x32_bf16 {vr(acc+4*x,4)}, {vr(128+16*t+8*x+4*hh,4)}, {vr(Q+4*hh,4)}, {c}")
            if t: fold(t - 1)
        fold(7)
        allS = [SREG[t] + r for t in range(8) for r in range(4)]
        for x in allS: s.rnd(x, x)
        for x in allS: a(f"v_mul_f32 v{x}, s{S_SCALE}, v{x}")
        for x in allS: s.rnd(x, x)
        a(f"v_max3_f32 v12, v{allS[0]}, v{allS[1]}, v{allS[2]}")
        for i in range(3, 31, 2): a(f"v_max3_f32 v12, v12, v{allS[i]}, v{allS[i+1]}")
        a(f"v_max_f32 v12, v12, v{allS[31]}")
        s.red_16("max", 12, 13); s.red_32("max", 12, 13)
        a(f"v_mul_f32 v14, s{S_LOG2E}, v12")
        for x in allS: a(f"v_fma_f32 v{x}, v{x}, s{S_LOG2E}, -v14")
        for x in allS: a(f"v_exp_f32 v{x}, v{x}")
        a(f"v_add_f32 v13, v{allS[0]}, v{allS[1]}")
        for x in allS[2:]: a(f"v_add_f32 v13, v13, v{x}")
        s.red_16("add", 13, 14); s.red_32("add", 13, 14)
        a(f"""
        s_lshl_b32 s{S_T0}, s{S_WAVE}, 6
        v_lshl_add_u32 v14, v1, 3, s{S_T0}
        v_mov_b32 v15, 1
        v_mov_b32 v7, 0
        s_mov_b64 exec, 0xff
        ds_write_b64 v14, v[12:13] offset:{L_ST}
        s_mov_b64 exec, 1
        ds_add_u32 v7, v15 offset:{F_CNT}
        s_mov_b64 exec, -1
        """)
        s.stamp(4, "pro")
        s.srd(R_T, P_WO, 8388608)
        a(f"""
        v_lshlrev_b32 v8, 12, v2
        v_lshl_add_u32 v8, v3, 3, v8
        s_lshl_b32 s{S_T0}, s{S_G8}, 1
        s_and_b32 s{S_T1}, s{S_C}, 1
        s_add_u32 s{S_T0}, s{S_T0}, s{S_T1}
        s_lshl_b32 s{S_T0}, s{S_T0}, 3
        s_add_u32 s{S_T0}, s{S_T0}, s{S_WAVE}
        s_lshl_b32 s{S_T2}, s{S_T0}, 16
        s_lshr_b32 s{S_T1}, s2, 4
        s_lshl_b32 s{S_T1}, s{S_T1}, 7
        s_add_u32 s{S_T2}, s{S_T2}, s{S_T1}
        """)
        for j in range(8):
            a(f"s_add_u32 s{S_T1}, s{S_T2}, {8*(j&3)*2048}")
            a(f"buffer_load_dwordx2 {vr(WO+2*j,2)}, v8, {sr(R_T,4)}, s{S_T1} offen offset:{(j>>2)*2048} {s.nt}")
        a("v_lshlrev_b32 v13, 2, v0\nv_lshlrev_b32 v10, 1, v0")
        for ai, p in enumerate([P_W1, P_B1, P_W2]):
            s.srd(R_U, p, 7168)
            a(f"s_movk_i32 s{S_T0}, 0x1000")
            a(f"buffer_load_dword v{RAW[4*ai]}, v13, {sr(R_U,4)}, 0 offen")
            a(f"buffer_load_dword v{RAW[4*ai+1]}, v13, {sr(R_U,4)}, 0 offen offset:2048")
            a(f"buffer_load_dword v{RAW[4*ai+2]}, v13, {sr(R_U,4)}, s{S_T0} offen")
            a(f"buffer_load_ushort v{RAW[4*ai+3]}, v10, {sr(R_U,4)}, s{S_T0} offen offset:2048")
        s.srd(R_U, P_X, 4096)
        a(f"""
        v_and_b32 v11, 31, v1
        v_lshlrev_b32 v11, 2, v11
        v_lshrrev_b32 v12, 5, v1
        v_lshl_add_u32 v11, v12, 1, v11
        s_lshl_b32 s{S_T0}, s{S_WAVE}, 7
        v_add_u32 v11, s{S_T0}, v11
        v_lshlrev_b32 v12, 1, v11
        s_and_b32 s{S_T0}, s2, 1
        s_lshl_b32 s{S_T0}, s{S_T0}, 11
        buffer_load_dword v{XF}, v12, {sr(R_U,4)}, s{S_T0} offen
        """)
        s.warm_code(157)
        a(f"s_cmp_eq_u32 s{S_WAVE}, 2\ns_cbranch_scc1 L_w2\ns_cmp_eq_u32 s{S_WAVE}, 3\ns_cbranch_scc1 L_w3")
        a(f"s_cmp_eq_u32 s{S_STATE}, 1\ns_cbranch_scc1 L_waitv")
        s.ticket(6)
        s.paced([lambda i=i: s.vload(i, VREG[i]) for i in range(20, 32)], 6)
        a.label("L_late2")
        s.release(6)
        a("v_and_b32 v6, 7, v3")
        s.stamp(5, "pro"); s.stamp(5, "str")
        a.label("L_pv")
        s.lds_wait(F_F, 1, 12)
        a(f"""
        s_lshl_b32 s{S_T0}, s{S_WAVE}, 5
        v_lshl_add_u32 v14, v6, 2, s{S_T0}
        ds_read_b32 v12, v14 offset:{L_F}
        s_waitcnt lgkmcnt(0)
        """)
        for x in allS: a(f"v_mul_f32 v{x}, v{x}, v12")
        for u in range(4):
            A_, B_ = SREG[2*u], SREG[2*u+1]
            a(f"v_cvt_pk_bf16_f32 v{A_}, v{A_}, v{A_+1}\nv_cvt_pk_bf16_f32 v{A_+1}, v{A_+2}, v{A_+3}")
            a(f"v_cvt_pk_bf16_f32 v{A_+2}, v{B_}, v{B_+1}\nv_cvt_pk_bf16_f32 v{A_+3}, v{B_+2}, v{B_+3}")
        k = 0
        for u in range(4):
            a(f"s_waitcnt vmcnt({24-8*u})")
            ld = VREG[8*u:8*u+8]
            for e in range(8):
                d = TMP + 4 * (k & 3); k += 1
                s.perm_op(d, ld, e)
                c = "0" if u == 0 else vr(O+4*e, 4)
                a(f"v_mfma_f32_16x16x32_bf16 {vr(O+4*e,4)}, {vr(d,4)}, {vr(SREG[2*u],4)}, {c}")
        a(f"""
        s_mul_i32 s{S_T0}, s{S_WAVE}, {SLAB}
        v_lshlrev_b32 v12, 7, v2
        v_lshl_add_u32 v12, v3, 4, v12
        v_add_u32 v12, s{S_T0}, v12
        s_mov_b32 exec_lo, 0x00ff00ff
        s_mov_b32 exec_hi, 0x00ff00ff
        """)
        for e in range(8):
            a(f"ds_write_b128 v12, {vr(O+4*e,4)} offset:{L_SLAB + 528*e}")
        a("s_mov_b64 exec, -1")
        a.label("L_tail")

    def w2(s):
        a = s.a
        a.label("L_w2")
        s.lds_wait(F_CNT, 8, 12)
        T = 224
        a(f"""
        v_lshlrev_b32 v14, 3, v1
        ds_read_b64 v[12:13], v14 offset:{L_ST}
        s_waitcnt lgkmcnt(0)
        v_mov_b32 v{T}, v12
        """)
        s.red_row("max", T, [8]); s.red_16("max", T, T+2); s.red_32("max", T, T+2)
        a(f"""
        v_sub_f32 v{T+1}, v12, v{T}
        v_mul_f32 v{T+1}, s{S_LOG2E}, v{T+1}
        v_exp_f32 v{T+1}, v{T+1}
        v_mul_f32 v{T+1}, v{T+1}, v13
        """)
        s.red_row("add", T+1, [8]); s.red_16("add", T+1, T+2); s.red_32("add", T+1, T+2)
        a(f"""
        v_min_u32 v{T}, -2, v{T}
        v_min_u32 v{T+1}, -2, v{T+1}
        s_lshl_b32 s{S_T2}, s{S_G8}, 11
        s_add_u32 s{S_T2}, s{S_T2}, {ML}
        s_lshl_b32 s{S_T0}, s{S_C}, 6
        s_add_u32 s{S_T0}, s{S_T0}, s{S_T2}
        s_mov_b64 exec, 0xff
        buffer_store_dwordx2 {vr(T,2)}, v14, {sr(R_WS,4)}, s{S_T0} offen sc1
        s_mov_b64 exec, -1
        """)
        G_ = T + 4
        a("s_waitcnt vmcnt(0)")
        s.poll_all([f"buffer_load_dwordx2 {vr(G_+2*i,2)}, v14, {sr(R_WS,4)}, s{S_T2} offen offset:{512*i} sc1" for i in range(4)],
                   range(G_, G_ + 8), T + 2, sleep=12)
        a(f"v_max3_f32 v{T}, v{G_}, v{G_+2}, v{G_+4}\nv_max_f32 v{T}, v{T}, v{G_+6}")
        s.red_row("max", T, [8]); s.red_16("max", T, T+2); s.red_32("max", T, T+2)
        for i in range(4):
            a(f"v_sub_f32 v{G_+2*i}, v{G_+2*i}, v{T}\nv_mul_f32 v{G_+2*i}, s{S_LOG2E}, v{G_+2*i}\nv_exp_f32 v{G_+2*i}, v{G_+2*i}")
        a(f"v_mul_f32 v{T+1}, v{G_}, v{G_+1}")
        for i in range(1, 4): a(f"v_fmac_f32 v{T+1}, v{G_+2*i}, v{G_+2*i+1}")
        s.red_row("add", T+1, [8]); s.red_16("add", T+1, T+2); s.red_32("add", T+1, T+2)
        a(f"""
        v_rcp_f32 v{T+1}, v{T+1}
        v_sub_f32 v12, v12, v{T}
        v_mul_f32 v12, s{S_LOG2E}, v12
        v_exp_f32 v12, v12
        v_mul_f32 v12, v12, v{T+1}
        v_lshlrev_b32 v14, 2, v1
        ds_write_b32 v14, v12 offset:{L_F}
        """)
        s.lds_set(F_F, 1, T)
        s.stamp(1, "pro")
        a("s_branch L_vtick")

    def w3(s):
        a = s.a
        a.label("L_w3")
        T = 224
        s.lds_wait(F_CLR, 2, 12)
        a(f"""
        v_lshrrev_b32 v12, 2, v1
        v_lshlrev_b32 v12, 9, v12
        v_and_b32 v13, 3, v1
        v_lshl_add_u32 v12, v13, 4, v12
        s_lshl_b32 s{S_T2}, s{S_C}, 13
        s_lshl_b32 s{S_T0}, s{S_G8}, 6
        s_add_u32 s{S_T2}, s{S_T2}, s{S_T0}
        s_add_u32 s{S_T2}, s{S_T2}, {MP}
        """)
        s.poll_all([f"buffer_load_dwordx4 {vr(T,4)}, v12, {sr(R_WS,4)}, s{S_T2} offen sc1"], range(T, T+4), T + 4, sleep=16)
        for q in range(4):
            s.red_row("add", T+q, [8]); s.red_16("add", T+q, T+4); s.red_32("add", T+q, T+4)
            s.rnd(T+q, T+q)
        a(f"""
        v_bfe_u32 v12, v1, 2, 1
        v_lshlrev_b32 v12, 14, v12
        v_lshl_add_u32 v12, v13, 4, v12
        s_lshl_b32 s{S_T0}, s2, 6
        s_add_u32 s{S_T0}, s{S_T0}, {MF}
        s_mov_b64 exec, 0xff
        buffer_store_dwordx4 {vr(T,4)}, v12, {sr(R_WS,4)}, s{S_T0} offen sc1
        s_mov_b64 exec, -1
        """)
        s.stamp(1, "pro")
        a(f"""
        v_lshlrev_b32 v12, 4, v1
        s_and_b32 s{S_T2}, s2, 1
        s_lshl_b32 s{S_T2}, s{S_T2}, 14
        s_waitcnt vmcnt(0)
        """)
        a("s_sleep 32")
        for half in range(2):
            loads = []
            for hi in range(2):
                a(f"s_add_u32 s{M0+hi}, s{S_T2}, {MF + 4096*(2*half+hi)}")
                for lo in range(4):
                    loads.append(f"buffer_load_dwordx4 {vr(T+16*hi+4*lo,4)}, v12, {sr(R_WS,4)}, s{M0+hi} offen offset:{1024*lo} sc1")
            s.poll_all(loads, range(T, T+32), 13, sleep=32)
            for k in range(8):
                a(f"ds_write_b128 v12, {vr(T+4*k,4)} offset:{L_MOD + 1024*(8*half+k)}")
            a("s_waitcnt lgkmcnt(0)")
        s.stamp(2, "pro")
        a("s_branch L_vtick")

    def ln_reduce(s, x0, x1, area, t):
        a = s.a
        a(f"""
        v_readfirstlane_b32 s{S_T0}, v{x0}
        v_subrev_f32 v{t+2}, s{S_T0}, v{x0}
        v_subrev_f32 v{t+3}, s{S_T0}, v{x1}
        v_add_f32 v{t}, v{t+2}, v{t+3}
        v_mul_f32 v{t+1}, v{t+2}, v{t+2}
        v_fmac_f32 v{t+1}, v{t+3}, v{t+3}
        """)
        for k in [8, 4, 2, 1]:
            s.red_row("add", t, [k]); s.red_row("add", t+1, [k])
        a(f"""
        v_permlane16_swap_b32 v{t}, v{t+1}
        v_add_f32 v{t}, v{t}, v{t+1}
        """)
        s.red_32("add", t, t+1)
        a(f"""
        v_mov_b32 v{t+1}, v{t}
        v_permlane16_swap_b32 v{t}, v{t+1}
        """)
        a(f"""
        v_mul_f32 v{t+2}, {hexf(1/128)}, v{t}
        v_fma_f32 v{t+1}, -v{t+2}, v{t}, v{t+1}
        v_add_f32 v{t}, s{S_T0}, v{t+2}
        s_lshl_b32 s{S_T1}, s{S_WAVE}, 3
        v_mov_b32 v{t+2}, s{S_T1}
        s_mov_b64 exec, 1
        ds_write_b64 v{t+2}, {vr(t,2)} offset:{area}
        s_mov_b64 exec, -1
        v_and_b32 v{t+2}, 7, v1
        v_lshlrev_b32 v{t+2}, 3, v{t+2}
        s_waitcnt lgkmcnt(0)
        s_barrier
        ds_read_b64 {vr(t,2)}, v{t+2} offset:{area}
        """)
    def ln_finish(s, t):
        a = s.a
        dpp8 = ["row_half_mirror", "quad_perm:[2,3,0,1]", "quad_perm:[1,0,3,2]"]
        a(f"v_mov_b32 v{t+2}, v{t}")
        for d in dpp8: a(f"v_add_f32_dpp v{t+2}, v{t+2}, v{t+2} {d} row_mask:0xf bank_mask:0xf")
        a(f"""
        v_mul_f32 v{t+2}, {hexf(0.125)}, v{t+2}
        v_sub_f32 v{t}, v{t}, v{t+2}
        v_mul_f32 v{t}, v{t}, v{t}
        v_fmamk_f32 v{t+1}, v{t}, {hexf(128.0)}, v{t+1}
        """)
        for d in dpp8: a(f"v_add_f32_dpp v{t+1}, v{t+1}, v{t+1} {d} row_mask:0xf bank_mask:0xf")
        a(f"v_mul_f32 v{t+1}, {hexf(1/1024)}, v{t+1}\nv_mov_b32 v{t}, v{t+2}")
        s.ln_scalars(t, t+1)

    def tail(s):
        a = s.a
        WO, RAW, XF = s.WO, s.RAW, s.XF
        a("s_waitcnt lgkmcnt(0)\ns_barrier")
        s.stamp(6, "pro"); s.stamp(1, "tail"); s.stamp(6, "str"); s.stamp(1, "dbg"); s.stamp(1, "x2b")
        a(f"s_cmp_ge_u32 s{S_WAVE}, 4\ns_cbranch_scc1 L_nopub")
        a(f"""
        v_and_b32 v12, 7, v0
        v_bfe_u32 v13, v0, 3, 2
        v_lshrrev_b32 v14, 5, v0
        v_mul_u32_u24 v15, 528, v12
        v_lshl_add_u32 v15, v13, 7, v15
        v_lshl_add_u32 v15, v14, 4, v15
        """)
        for w in range(8):
            a(f"ds_read_b128 {vr(48+4*w,4)}, v15 offset:{L_SLAB + SLAB*w}")
        a(f"""
        v_lshlrev_b32 v16, 14, v14
        v_lshl_add_u32 v16, v13, 12, v16
        v_lshl_add_u32 v16, v12, 3, v16
        s_and_b32 s{S_T0}, s{S_G8}, 3
        s_lshl_b32 s{S_T0}, s{S_T0}, 17
        s_lshr_b32 s{S_T1}, s{S_G8}, 2
        s_lshl_b32 s{S_T1}, s{S_T1}, 11
        s_add_u32 s{S_T0}, s{S_T0}, s{S_T1}
        s_lshl_b32 s{S_T1}, s{S_C}, 6
        s_add_u32 s{S_T0}, s{S_T0}, s{S_T1}
        s_add_u32 s{S_T0}, s{S_T0}, {H1}
        s_waitcnt lgkmcnt(0)
        """)
        for (x, y) in [(0,1),(2,3),(4,5),(6,7),(0,2),(4,6),(0,4)]:
            for h in range(2):
                a(f"v_pk_add_f32 {vr(48+4*x+2*h,2)}, {vr(48+4*x+2*h,2)}, {vr(48+4*y+2*h,2)}")
        a(f"""
        v_cvt_pk_bf16_f32 v52, v48, v49
        v_cvt_pk_bf16_f32 v53, v50, v51
        v_min_u32 v52, -2, v52
        v_min_u32 v53, -2, v53
        buffer_store_dwordx2 v[52:53], v16, {sr(R_WS,4)}, s{S_T0} offen sc1
        s_waitcnt vmcnt(1)
        s_branch L_pubdone
        """)
        a.label("L_nopub")
        a("s_waitcnt vmcnt(0)")
        a.label("L_pubdone")
        WB = 24
        ld = [WO + 2 * j for j in range(8)]
        for e in range(4): s.perm_op(WB + 4 * e, ld, e)
        a(f"""
        v_and_b32 v12, 1, v3
        v_lshlrev_b32 v12, 11, v12
        v_lshrrev_b32 v13, 1, v3
        v_lshl_add_u32 v12, v13, 6, v12
        v_lshl_add_u32 v12, v2, 4, v12
        s_lshl_b32 s{S_T0}, s{S_G8}, 1
        s_and_b32 s{S_T1}, s{S_C}, 1
        s_add_u32 s{S_T0}, s{S_T0}, s{S_T1}
        s_lshl_b32 s{S_T2}, s{S_T0}, 3
        s_add_u32 s{S_T2}, s{S_T2}, s{S_WAVE}
        s_lshl_b32 s{S_T2}, s{S_T2}, 12
        s_add_u32 s{S_T2}, s{S_T2}, {H1}
        """)
        CO = 160
        a(f"s_mov_b32 s{S_T0}, {hexf(K1)}\nv_mov_b32 v20, {hexf(K0)}")
        for k in range(7):
            for ai, d in enumerate([16, 17, 18]):
                src = RAW[4*ai + k//2]
                if k & 1: a(f"v_and_b32 v{d}, 0xffff0000, v{src}")
                else: a(f"v_lshlrev_b32 v{d}, 16, v{src}")
            c = CO + 6 * k
            a(f"""
            v_mul_f32 v19, v17, v17
            v_mul_f32 v19, s{S_T0}, v19
            v_add_f32 v{c}, v20, v19
            v_mul_f32 v{c}, v{c}, v17
            v_fmamk_f32 v{c+1}, v19, {hexf(3.0)}, v20
            v_mul_f32 v{c+1}, v{c+1}, v16
            v_mul_f32 v19, v16, v16
            v_mul_f32 v19, s{S_T0}, v19
            v_mul_f32 v{c+3}, v19, v16
            v_mul_f32 v19, v19, v17
            v_mul_f32 v{c+2}, {hexf(3.0)}, v19
            v_mul_f32 v{c+4}, v17, v18
            v_mul_f32 v{c+5}, v16, v18
            """)
        a(f"""
        v_lshlrev_b32 v13, 2, v11
        ds_read_b64 v[40:41], v13 offset:{L_MOD}
        ds_read_b64 v[42:43], v13 offset:{L_MOD+4096}
        ds_read_b64 v[44:45], v13 offset:{L_MOD+8192}
        v_lshlrev_b32 v46, 16, v{XF}
        v_and_b32 v47, 0xffff0000, v{XF}
        s_waitcnt lgkmcnt(0)
        v_add_f32 v44, 1.0, v44
        v_add_f32 v45, 1.0, v45
        """)
        s.rnd(44, 44); s.rnd(45, 45)
        s.poll_masked([(f"buffer_load_dwordx4 {vr(48+4*t,4)}, v12, {sr(R_WS,4)}, s{S_T2} offen offset:{512*t} sc1", range(48+4*t, 52+4*t)) for t in range(4)], 16)
        s.stamp(2, "tail")
        ACC = 64
        for t in range(4):
            for e in range(4):
                c = "0" if t == 0 else vr(ACC+4*e, 4)
                a(f"v_mfma_f32_16x16x32_bf16 {vr(ACC+4*e,4)}, {vr(48+4*t,4)}, {vr(WB+4*e,4)}, {c}")
        a(f"""
        s_lshl_b32 s{S_T0}, s{S_WAVE}, 10
        v_lshl_add_u32 v12, v1, 4, s{S_T0}
        """)
        for e in range(4):
            a(f"v_pk_add_f32 {vr(ACC+4*e,2)}, {vr(ACC+4*e,2)}, {vr(ACC+4*e+2,2)}")
        for e in range(4):
            a(f"v_permlane32_swap_b32 v{ACC+4*e}, v{ACC+4*e+1}")
        for e in range(4):
            a(f"v_add_f32 v{80+e}, v{ACC+4*e}, v{ACC+4*e+1}")
        a(f"""
        ds_write_b128 v12, v[80:83] offset:{L_S2}
        s_waitcnt lgkmcnt(0)
        s_barrier
        s_cmp_lg_u32 s{S_WAVE}, 0
        s_cbranch_scc1 L_nopub2
        """)
        for w in range(8):
            a(f"ds_read_b128 {vr(48+4*w,4)}, v12 offset:{L_S2 + 1024*w}")
        a(f"""
        v_lshrrev_b32 v13, 5, v1
        v_lshlrev_b32 v13, 16, v13
        v_lshl_add_u32 v13, v3, 4, v13
        s_lshl_b32 s{S_T0}, s{S_G8}, 1
        s_and_b32 s{S_T1}, s{S_C}, 1
        s_add_u32 s{S_T0}, s{S_T0}, s{S_T1}
        s_lshl_b32 s{S_T0}, s{S_T0}, 12
        s_lshr_b32 s{S_T1}, s2, 4
        s_lshl_b32 s{S_T1}, s{S_T1}, 8
        s_add_u32 s{S_T0}, s{S_T0}, s{S_T1}
        s_add_u32 s{S_T0}, s{S_T0}, {AP}
        s_waitcnt lgkmcnt(0)
        """)
        for (x, y) in [(0,1),(2,3),(4,5),(6,7),(0,2),(4,6),(0,4)]:
            for h in range(2):
                a(f"v_pk_add_f32 {vr(48+4*x+2*h,2)}, {vr(48+4*x+2*h,2)}, {vr(48+4*y+2*h,2)}")
        for q in range(4): a(f"v_mov_b32 v{52+q}, v{48+q}")
        for q in range(4): a(f"v_permlane16_swap_b32 v{48+q}, v{52+q}")
        for q in range(4): a(f"v_add_f32 v{48+q}, v{48+q}, v{52+q}")
        for q in range(4): a(f"v_min_u32 v{48+q}, -2, v{48+q}")
        a(f"""
        s_mov_b32 exec_lo, 0x0000ffff
        s_mov_b32 exec_hi, 0x0000ffff
        buffer_store_dwordx4 v[48:51], v13, {sr(R_WS,4)}, s{S_T0} offen sc1
        s_mov_b64 exec, -1
        s_nop 1
        """)
        a.label("L_nopub2")
        a("s_barrier")
        s.stamp(3, "tail")
        a(f"""
        v_lshrrev_b32 v12, 5, v1
        v_lshlrev_b32 v12, 15, v12
        v_and_b32 v13, 31, v1
        v_lshl_add_u32 v12, v13, 4, v12
        s_and_b32 s{S_T0}, s2, 1
        s_lshl_b32 s{S_T0}, s{S_T0}, 16
        s_lshl_b32 s{S_T1}, s{S_WAVE}, 9
        s_add_u32 s{S_T0}, s{S_T0}, s{S_T1}
        s_add_u32 s{S_T0}, s{S_T0}, {AP}
        """)
        for i in range(8):
            a(f"v_add_u32 v{112+i}, {4096*i}, v12")
        s.poll_masked([(f"buffer_load_dwordx4 {vr(64+4*i,4)}, v{112+i}, {sr(R_WS,4)}, s{S_T0} offen sc1", range(64+4*i, 68+4*i)) for i in range(8)], 16)
        s.stamp(4, "tail")
        for (x, y) in [(0,1),(2,3),(4,5),(6,7),(0,2),(4,6),(0,4)]:
            for h in range(2):
                a(f"v_pk_add_f32 {vr(64+4*x+2*h,2)}, {vr(64+4*x+2*h,2)}, {vr(64+4*y+2*h,2)}")
        a(f"""
        v_permlane32_swap_b32 v64, v66
        v_permlane32_swap_b32 v65, v67
        v_add_f32 v64, v64, v66
        v_add_f32 v65, v65, v67
        """)
        for q in range(2): s.rnd(64+q, 64+q)
        for q in range(2): a(f"v_mul_f32 v{64+q}, v{64+q}, v{40+q}")
        for q in range(2): s.rnd(64+q, 64+q)
        for q in range(2): a(f"v_add_f32 v{64+q}, v{64+q}, v{46+q}")
        for q in range(2): s.rnd(64+q, 64+q)
        a(f"v_lshlrev_b32 v13, 2, v11\nv_add_u32 v13, {L_HL}, v13")
        a(f"ds_write_b64 v13, v[64:65] offset:{L_X2-L_HL}")
        s.ln_reduce(64, 65, L_RED, 68)
        a("s_waitcnt lgkmcnt(0)")
        s.ln_finish(68)
        for q in range(2): a(f"v_sub_f32 v{66+q}, v{64+q}, v68")
        for q in range(2): s.rnd(66+q, 66+q)
        for q in range(2): a(f"v_mul_f32 v{66+q}, v{66+q}, v69")
        for q in range(2): s.rnd(66+q, 66+q)
        for q in range(2): a(f"v_mul_f32 v{66+q}, v{66+q}, v{44+q}")
        for q in range(2): s.rnd(66+q, 66+q)
        for q in range(2): a(f"v_add_f32 v{66+q}, v{66+q}, v{42+q}")
        for q in range(2): s.rnd(66+q, 66+q)
        a("ds_write_b64 v13, v[66:67]")
        s.ln_reduce(66, 67, L_RED + 64, 68)
        a(f"""
        s_lshr_b32 s{S_T0}, s2, 1
        s_lshl_b32 s{S_T0}, s{S_T0}, 5
        s_add_u32 s{S_T2}, s{S_T0}, {L_HL}
        v_mov_b32 v14, s{S_T2}
        ds_read_b128 v[80:83], v14
        ds_read_b128 v[84:87], v14 offset:16
        s_waitcnt lgkmcnt(0)
        """)
        s.ln_finish(68)
        for q in range(8): a(f"v_sub_f32 v{80+q}, v{80+q}, v68")
        for q in range(8): s.rnd(80+q, 80+q)
        for q in range(8): a(f"v_mul_f32 v{80+q}, v{80+q}, v69")
        for q in range(8): s.rnd(80+q, 80+q)
        for p in range(4): a(f"v_pk_mul_f32 {vr(88+2*p,2)}, {vr(80+2*p,2)}, {vr(80+2*p,2)}")
        for p in range(4): a(f"v_pk_mul_f32 {vr(96+2*p,2)}, {vr(88+2*p,2)}, {vr(80+2*p,2)}")
        s.stamp(5, "tail")
        a("v_mov_b32 v104, 1.0\nv_mov_b32 v105, 1.0")
        Y = 48; Z = 112; GG = 120
        for k in range(7):
            c = 160 + 6 * k
            for p in range(4):
                a(f"v_pk_fma_f32 {vr(Z+2*p,2)}, {vr(c,2)}, {vr(80+2*p,2)}, {vr(c,2)} op_sel:[1,0,0] op_sel_hi:[1,1,0]")
            for p in range(4):
                a(f"v_pk_fma_f32 {vr(Z+2*p,2)}, {vr(c+2,2)}, {vr(88+2*p,2)}, {vr(Z+2*p,2)} op_sel:[0,0,0] op_sel_hi:[0,1,1]")
            for p in range(4):
                a(f"v_pk_fma_f32 {vr(Z+2*p,2)}, {vr(c+2,2)}, {vr(96+2*p,2)}, {vr(Z+2*p,2)} op_sel:[1,0,0] op_sel_hi:[1,1,1]")
            for q in range(8): a(f"v_exp_f32 v{Z+q}, v{Z+q}")
            for p in range(4):
                a(f"v_pk_fma_f32 {vr(GG+2*p,2)}, {vr(c+4,2)}, {vr(80+2*p,2)}, {vr(c+4,2)} op_sel:[1,0,0] op_sel_hi:[1,1,0]")
            for p in range(4):
                a(f"v_pk_add_f32 {vr(Z+2*p,2)}, {vr(Z+2*p,2)}, v[104:105]")
            for q in range(8): a(f"v_rcp_f32 v{Z+q}, v{Z+q}")
            for p in range(4):
                if k == 0: a(f"v_pk_mul_f32 {vr(Y+2*p,2)}, {vr(GG+2*p,2)}, {vr(Z+2*p,2)}")
                else: a(f"v_pk_fma_f32 {vr(Y+2*p,2)}, {vr(GG+2*p,2)}, {vr(Z+2*p,2)}, {vr(Y+2*p,2)}")
        s.stamp(6, "tail")
        for q in range(4): a(f"v_permlane32_swap_b32 v{Y+q}, v{Y+4+q}")
        for q in range(4): a(f"v_add_f32 v{Y+q}, v{Y+q}, v{Y+4+q}")
        for q in range(2): a(f"v_permlane16_swap_b32 v{Y+q}, v{Y+2+q}")
        for q in range(2): a(f"v_add_f32 v{Y+q}, v{Y+q}, v{Y+2+q}")
        for k in [8, 4, 2, 1]:
            for q in range(2): s.red_row("add", Y+q, [k])
        a(f"""
        s_lshl_b32 s{S_T0}, s{S_WAVE}, 5
        v_lshl_add_u32 v12, v2, 3, s{S_T0}
        s_mov_b32 exec_lo, 0x00010001
        s_mov_b32 exec_hi, 0x00010001
        ds_write_b64 v12, {vr(Y,2)} offset:{L_RED+128}
        s_mov_b64 exec, -1
        s_waitcnt lgkmcnt(0)
        s_barrier
        s_cmp_lg_u32 s{S_WAVE}, 0
        s_cbranch_scc1 L_fin
        v_lshlrev_b32 v12, 2, v1
        ds_read_b32 v48, v12 offset:{L_RED+128}
        v_and_b32 v13, 7, v1
        v_lshl_add_u32 v13, v13, 2, s{S_T2}
        ds_read_b32 v49, v13 offset:{L_X2-L_HL}
        v_subrev_u32 v13, {L_HL - L_MOD - 12288}, v13
        ds_read_b32 v50, v13
        s_lshl_b32 s{S_B2}, s{S_B2}, 16
        s_waitcnt lgkmcnt(0)
        """)
        s.red_row("add", 48, [8]); s.red_16("add", 48, 51); s.red_32("add", 48, 51)
        s.rnd(48, 48)
        a(f"v_add_f32 v48, s{S_B2}, v48"); s.rnd(48, 48)
        a("v_mul_f32 v48, v48, v50"); s.rnd(48, 48)
        a("v_add_f32 v48, v48, v49")
        a("v_cvt_pk_bf16_f32 v48, v48, v48")
        s.srd(R_U, P_OUT, 4096)
        a(f"""
        v_lshlrev_b32 v12, 1, v1
        s_and_b32 s{S_T0}, s2, 1
        s_lshl_b32 s{S_T0}, s{S_T0}, 11
        s_lshr_b32 s{S_T1}, s2, 1
        s_lshl_b32 s{S_T1}, s{S_T1}, 4
        s_add_u32 s{S_T0}, s{S_T0}, s{S_T1}
        s_mov_b64 exec, 0xff
        buffer_store_short v48, v12, {sr(R_U,4)}, s{S_T0} offen
        s_cmp_lg_u32 s2, 0
        s_cbranch_scc1 L_noepo
        s_mul_i32 s{S_T2}, s{S_EPO}, 0x9e3779b1
        s_add_u32 s{S_T2}, s{S_T2}, 0x7f4a7c15
        s_mov_b64 exec, 1
        v_mov_b32 v49, s{S_T2}
        v_mov_b32 v50, {EPO}
        buffer_store_dword v49, v50, {sr(R_WS,4)}, 0 offen
        L_noepo:
        s_mov_b64 exec, -1
        """)
        a.label("L_fin")
        if s.stamps in ("x2", "x2b"):
            a(f"s_memrealtime s[{M0}:{M0+1}]\ns_waitcnt lgkmcnt(0)")
            a(f"s_cmp_lg_u32 s{S_WAVE}, 0\ns_cbranch_scc1 L_end")
            src = M0 if s.stamps == "x2" else S_ST + 2
            a(f"s_sub_u32 s{S_T0}, s{src}, s{S_ST}")
            a.label("L_spin")
            a(f"s_memrealtime s[{M0+2}:{M0+3}]\ns_waitcnt lgkmcnt(0)\ns_sub_u32 s{S_T1}, s{M0+2}, s{M0}\ns_cmp_lt_u32 s{S_T1}, s{S_T0}\ns_cbranch_scc1 L_spin")
        elif s.stamps == "dbg":
            a(f"s_memrealtime s[{M0}:{M0+1}]\ns_waitcnt lgkmcnt(0)")
            a(f"s_cmp_lg_u32 s{S_WAVE}, 0\ns_cbranch_scc1 L_end")
            a(f"s_not_b32 s{S_T0}, s{S_ST}\nv_mov_b32 v48, s{M0}\nv_mov_b32 v49, s{S_T0}\nv_mov_b32 v50, s{S_ST+2}\nv_mov_b32 v51, s{S_ST}\nv_mov_b32 v12, 0\ns_mov_b64 exec, 1")
            a(f"global_atomic_umax v12, v48, s[{P_DBG}:{P_DBG+1}]")
            a(f"global_atomic_umax v12, v49, s[{P_DBG}:{P_DBG+1}] offset:4")
            a(f"global_atomic_umax v12, v50, s[{P_DBG}:{P_DBG+1}] offset:8")
            a(f"global_atomic_umax v12, v51, s[{P_DBG}:{P_DBG+1}] offset:12")
        elif s.stamps:
            a(f"s_memrealtime s[{M0}:{M0+1}]\ns_waitcnt lgkmcnt(0)")
            for i in range(14): a(f"v_mov_b32 v{48+i}, s{S_ST+i}")
            a(f"v_mov_b32 v62, s{M0}\nv_mov_b32 v63, s{M0+1}")
            a(f"""
            s_lshl_b32 s{S_T0}, s2, 3
            s_add_u32 s{S_T0}, s{S_T0}, s{S_WAVE}
            s_lshl_b32 s{S_T0}, s{S_T0}, 6
            s_add_u32 s{S_T0}, s{S_T0}, {STAMP}
            v_mov_b32 v12, 0
            s_mov_b64 exec, 1
            """)
            for i in range(4):
                a(f"buffer_store_dwordx4 {vr(48+4*i,4)}, v12, {sr(R_WS,4)}, s{S_T0} offen offset:{16*i}")
        a("s_endpgm")

    def build(s):
        a = s.a
        if s.stamps:
            pass
        s.prologue()
        if s.stamps:
            pass
        s.w0(); s.w7(); s.w1()
        s.stream()
        s.tail()
        s.w2(); s.w3()
        a.label("L_end")
        a("s_endpgm")
        ref = open("adaLN_cond__gqa_block_cached__mixer_token_mlp__decode.s.ref").read()
        head = ref.split("; Override launch")[0]
        out = head + f"; @launch grid=(256,1,1) block=(512,1,1) lds={LDS_BYTES}\n"
        out += f""".amdgcn_target "amdgcn-amd-amdhsa--gfx950"
.text
.globl {NAME}
.p2align 8
.type {NAME},@function
{NAME}:
"""
        out += a.text()
        out += f""".section .rodata,"a"
.p2align 6
.amdhsa_kernel {NAME}
  .amdhsa_next_free_vgpr 256
  .amdhsa_next_free_sgpr 102
  .amdhsa_accum_offset 256
  .amdhsa_group_segment_fixed_size 0
  .amdhsa_kernarg_size 120
  .amdhsa_user_sgpr_count 2
  .amdhsa_user_sgpr_kernarg_segment_ptr 1
  .amdhsa_system_sgpr_workgroup_id_x 1
  .amdhsa_float_denorm_mode_32 3
.end_amdhsa_kernel
"""
        return out

if __name__ == "__main__":
    import argparse
    ap = argparse.ArgumentParser()
    ap.add_argument("-o", default="k.s"); ap.add_argument("--stamps", default=None); ap.add_argument("--nt", default="nt"); ap.add_argument("--depth", type=int, default=28)
    args = ap.parse_args()
    g = G(stamps=args.stamps, nt=args.nt, depth=args.depth)
    open(args.o, "w").write(g.build())
    print("nops inserted:", g.a.nops, "lines:", len(g.a.out))
```

```python
import sys, math
from asmlib import Asm, hexf, f2u

NAME = "adaLN_cond__gqa_block_cached__mixer_token_mlp__decode_kernel"
HDR = open("adaLN_cond__gqa_block_cached__mixer_token_mlp__decode.s.ref").read().split("; Override launch")[0] if len(sys.argv) > 99 else ""

ROUT = 0x000000
RB   = 160 * 256
PT1  = 0x060000
PTQ  = 0x080000
PTM  = 0x0A0000
SA  = 0x100000
H1  = SA + 0x000000
AP  = SA + 0x080000
ML  = SA + 0x0A0000
FLG = 0x040000
EPO = 0x050000
STAMP = 0x8000000
F_TOK, F_Q, F_CNT, F_F, F_VD, F_K, F_NEXT = 0, 4, 8, 12, 16, 24, 32
L_Q   = 0x400
L_ST  = 0x1000
L_F   = 0x1200
L_RED = 0x1400
L_SLAB = 0x1800
SLAB = 4224
L_ACT = 0x1800
L_S2  = 0xDC00
L_HL  = 0x10000
L_X2  = 0x11000
L_GB  = 0x12000
L_KB  = 0x13000
LDS_BYTES = 0x23000

KOFF = [0, 128, 2048, 2176]
LOG2E = 1.4426950408889634
SCALE = 128 ** -0.5
K0 = -2.0 * math.sqrt(2.0 / math.pi) * LOG2E
K1 = K0 * 0.044715

def vr(a, n=1): return f"v[{a}:{a+n-1}]" if n > 1 else f"v{a}"
def sr(a, n=1): return f"s[{a}:{a+n-1}]" if n > 1 else f"s{a}"

S_WG, S_WAVE, S_G8, S_C = 2, 3, 5, 6
S_T0, S_T1, S_T2 = 7, 8, 9
S_BUD = 10
S_SELLO, S_SELHI = 11, 12
S_KV = 13
S_LOG2E, S_SCALE = 14, 15
P_X, P_K, P_V, P_WQ, P_WO, P_W1, P_B1, P_W2, P_B2, P_C, P_WM, P_OUT, P_DBG, P_WS = 16,18,20,22,24,28,30,32,34,36,38,40,42,44
S_B2 = 46
S_STATE = 47
S_TB = 84
S_CR = 27
S_TAG = 26
R_K, R_V, R_WS, R_T, R_U = 48, 52, 56, 60, 64
M_H, M_B = 68, 70
M0 = 72
S_ST = 88

class G:
    def __init__(s, stamps=False, nt="nt", depth=20, fake="", rdepth=12):
        s.wolast = True
        s.a = Asm(); s.stamps = stamps; s.nt = nt; s.nst = 0; s.D = depth; s.fake = fake
        if fake:
            real = s.a.__class__.__call__
            class FA(Asm):
                def __call__(t, text, safe=False):
                    keep = []
                    for line in text.strip().split("\n"):
                        l = line.strip()
                        if "S" in fake and "store" in l and "sc1" in l: continue
                        if "G" in fake and "load" in l and "sc1" in l: continue
                        ph = getattr(s, "phase", "")
                        if "store" in l and "sc1" in l:
                            if "c" in fake and ph == "w7": continue
                            if "p" in fake and ph in ("w0", "w1", "w2", "w3"): continue
                            if "t" in fake and ph == "tail": continue
                        if "load" in l and "sc1" in l:
                            if "g" in fake and ph != "tail": continue
                            if "h" in fake and ph == "tail": continue
                            if "m" in fake and ph == "stream": continue
                            if "2" in fake and ph == "w2": continue
                            if "1" in fake and ph in ("w0", "w1", "w7"): continue
                        if "x" in fake and "sc1" in l and "store" in l and ph == "w2": continue
                        if "W" in fake and l.startswith("global_load_dword v157"): l = "s_nop 0"
                        if "R" in fake and (l.startswith("buffer_load_dword v") or l.startswith("buffer_load_ushort")): continue
                        if "O" in fake and l.startswith("buffer_load_dwordx2 v[2") and "v8," in l: continue
                        keep.append(l)
                    real(t, "\n".join(keep), safe)
            s.a = FA()
    def srd(s, r, p, size):
        s.a(f"s_mov_b32 s{r}, s{p}\ns_mov_b32 s{r+1}, s{p+1}\ns_mov_b32 s{r+2}, {size}\ns_mov_b32 s{r+3}, 0x20000")
    def stamp(s, i, grp=None):
        if s.stamps and (grp is None or grp == s.stamps):
            assert i < 7
            s.a(f"s_memrealtime s[{S_ST+2*i}:{S_ST+2*i+1}]")
    def rnd(s, d, x):
        s.a(f"v_cvt_pk_bf16_f32 v{d}, 0, v{x}")
    def lds_wait(s, addr, val, vt, sleep=2, pad=True):
        a = s.a; L = a.newlabel("LW"); D = a.newlabel("LWD")
        a(f"v_mov_b32 v{vt+1}, 0")
        a.label(L)
        a(f"ds_read_b32 v{vt}, v{vt+1} offset:{addr}")
        a("s_waitcnt lgkmcnt(0)")
        a(f"v_readfirstlane_b32 s{S_T0}, v{vt}")
        a(f"s_cmp_ge_u32 s{S_T0}, {val}")
        a(f"s_cbranch_scc1 {D}", safe=True)
        a(f"s_sleep {sleep}")
        a(f"s_sub_u32 s{S_BUD}, s{S_BUD}, 1")
        a(f"s_cbranch_scc0 {L}", safe=True)
        a(f"s_mov_b32 s{S_BUD}, 0")
        a.label(D)
        if pad: a("s_nop 4")
    def lds_set(s, addr, val, vt):
        a = s.a
        a(f"v_mov_b32 v{vt}, {val}\nv_mov_b32 v{vt+1}, 0")
        a(f"ds_write_b32 v{vt+1}, v{vt} offset:{addr}")
    def ticket(s, vt):
        a = s.a
        a(f"""
        v_mov_b32 v{vt}, 1
        v_mov_b32 v{vt+1}, 0
        s_mov_b64 exec, 1
        ds_add_rtn_u32 v{vt}, v{vt+1}, v{vt} offset:{F_NEXT}
        s_mov_b64 exec, -1
        s_waitcnt lgkmcnt(0)
        v_readfirstlane_b32 s{S_CR}, v{vt}
        s_lshl_b32 s{S_CR}, s{S_CR}, 2
        s_add_u32 s{S_CR}, s{S_CR}, {4*8-3}
        """)
    def credit(s, vt):
        s.lds_wait(F_TOK, f"s{S_CR}", vt, sleep=1, pad=False)
        s.a(f"s_add_u32 s{S_CR}, s{S_CR}, 1")
    def paced(s, loads, vt, ramp=True, start=0, skip_first=False):
        st = s.D // 4
        for i, l in enumerate(loads):
            k = start + i
            if ramp and k % st == 0 and k < 4 * st and not (skip_first and k == 0): s.credit(vt)
            if k >= s.D: s.a(f"s_waitcnt vmcnt({s.D-1})")
            l()
        if ramp:
            n = start + len(loads)
            for k in range(0, 4 * st, st):
                if k >= n: s.credit(vt)
    def release(s, vt):
        a = s.a; st = s.D // 4
        a(f"v_mov_b32 v{vt}, 1\nv_mov_b32 v{vt+1}, 0\ns_mov_b64 exec, 1")
        for i in range(4):
            if i: a(f"s_waitcnt vmcnt({s.D - st*i})")
            a(f"ds_add_u32 v{vt+1}, v{vt} offset:{F_TOK}")
        a("s_mov_b64 exec, -1")
    def umax(s, d, regs):
        a = s.a; regs = list(regs)
        if len(regs) == 1: a(f"v_mov_b32 v{d}, v{regs[0]}"); return
        if len(regs) == 2: a(f"v_max_u32 v{d}, v{regs[0]}, v{regs[1]}"); return
        a(f"v_max3_u32 v{d}, v{regs[0]}, v{regs[1]}, v{regs[2]}"); regs = regs[3:]
        while len(regs) >= 2:
            a(f"v_max3_u32 v{d}, v{d}, v{regs[0]}, v{regs[1]}"); regs = regs[2:]
        if regs: a(f"v_max_u32 v{d}, v{d}, v{regs[0]}")
    def poll_all(s, loads, regs, vt, sleep=4):
        a = s.a; L = a.newlabel("PA"); D = a.newlabel("PAD")
        a.label(L)
        for l in loads: a(l)
        a("s_waitcnt vmcnt(0)")
        s.umax(vt, regs)
        a(f"v_cmp_eq_u32 vcc, -1, v{vt}")
        if s.fake: a(f"s_branch {D}")
        a(f"s_cbranch_vccz {D}", safe=True)
        if sleep: a(f"s_sleep {sleep}")
        a(f"s_sub_u32 s{S_BUD}, s{S_BUD}, 1")
        a(f"s_cbranch_scc0 {L}", safe=True)
        a(f"s_mov_b32 s{S_BUD}, 0")
        a.label(D)
        a("s_nop 4")
    def poll_masked(s, loads, vt):
        a = s.a; L = a.newlabel("PM"); D = a.newlabel("PMD")
        n = len(loads); assert n <= 8
        for l, _ in loads: a(l)
        a.label(L)
        a("s_waitcnt vmcnt(0)")
        for i, (l, regs) in enumerate(loads):
            s.umax(vt + i, regs)
        for i in range(n):
            a(f"v_cmp_eq_u32 s[{M0+2*i}:{M0+2*i+1}], -1, v{vt+i}")
        a(f"s_or_b64 vcc, s[{M0}:{M0+1}], s[{M0+2}:{M0+3}]")
        for i in range(2, n):
            a(f"s_or_b64 vcc, vcc, s[{M0+2*i}:{M0+2*i+1}]")
        if s.fake: a(f"s_branch {D}")
        a(f"s_cbranch_scc0 {D}", safe=True)
        for i, (l, _) in enumerate(loads):
            K = a.newlabel("PK")
            a(f"s_mov_b64 exec, s[{M0+2*i}:{M0+2*i+1}]")
            a(f"s_cbranch_execz {K}", safe=True)
            a(l)
            a.label(K)
        a("s_mov_b64 exec, -1")
        a(f"s_sub_u32 s{S_BUD}, s{S_BUD}, 1")
        a(f"s_cbranch_scc0 {L}", safe=True)
        a(f"s_mov_b32 s{S_BUD}, 0")
        a("s_waitcnt vmcnt(0)")
        a.label(D)
    def red_row(s, op, x, steps):
        for k in steps:
            s.a(f"v_{op}_f32_dpp v{x}, v{x}, v{x} row_ror:{k} row_mask:0xf bank_mask:0xf")
    def red_16(s, op, x, t):
        s.a(f"v_mov_b32 v{t}, v{x}\nv_permlane16_swap_b32 v{x}, v{t}\nv_{op}_f32 v{x}, v{x}, v{t}")
    def red_32(s, op, x, t):
        s.a(f"v_mov_b32 v{t}, v{x}\nv_permlane32_swap_b32 v{x}, v{t}\nv_{op}_f32 v{x}, v{x}, v{t}")

    def warm_code(s, vd):
        a = s.a; L = a.newlabel("PC")
        a(f"s_getpc_b64 s[{M0}:{M0+1}]")
        a.label(L)
        a(f"s_sub_u32 s{M0}, s{M0}, {L}-{NAME}")
        a(f"s_subb_u32 s{M0+1}, s{M0+1}, 0")
        a(f"v_lshlrev_b32 v{vd}, 6, v0")
        a(f"v_min_u32 v{vd}, L_end-{NAME}, v{vd}")
        a(f"global_load_dword v{vd}, v{vd}, s[{M0}:{M0+1}]")

    def perm_op(s, dst, ld, e):
        sel = S_SELHI if e & 1 else S_SELLO
        for jj in range(4):
            s.a(f"v_perm_b32 v{dst+jj}, v{ld[2*jj+1]+(e>>1)}, v{ld[2*jj]+(e>>1)}, s{sel}")

    def prologue(s):
        a = s.a
        a(f"""
        s_cmp_ge_u32 s2, 256
        s_cbranch_scc1 L_end
        s_load_dwordx16 s[16:31], s[0:1], 0
        s_load_dwordx8 s[32:39], s[0:1], 64
        s_load_dwordx4 s[40:43], s[0:1], 96
        s_load_dwordx2 s[44:45], s[0:1], 112
        """)
        s.warm_code(47)
        s.stamp(0)
        a(f"""
        v_lshrrev_b32 v4, 6, v0
        v_and_b32 v1, 63, v0
        v_readfirstlane_b32 s{S_WAVE}, v4
        v_lshrrev_b32 v2, 4, v1
        v_and_b32 v3, 15, v1
        v_mov_b32 v4, 0
        v_lshlrev_b32 v5, 2, v1
        ds_write_b32 v5, v4
        s_and_b32 s{S_G8}, s2, 7
        s_lshr_b32 s{S_C}, s2, 3
        s_mov_b32 s{S_BUD}, 400000
        s_mov_b32 s{S_SELLO}, 0x05040100
        s_mov_b32 s{S_SELHI}, 0x07060302
        s_mov_b32 s{S_LOG2E}, {hexf(LOG2E)}
        s_mov_b32 s{S_SCALE}, {hexf(SCALE)}
        s_mov_b32 s{M_H}, 0xffff0000
        s_mov_b32 s{M_H+1}, 0xffff0000
        s_mov_b32 s{M_B}, 0
        s_mov_b32 s{M_B+1}, -1
        s_lshl_b32 s{S_KV}, s{S_G8}, 23
        s_lshl_b32 s{S_T0}, s{S_C}, 18
        s_add_u32 s{S_KV}, s{S_KV}, s{S_T0}
        s_lshl_b32 s{S_T0}, s{S_WAVE}, 15
        s_add_u32 s{S_KV}, s{S_KV}, s{S_T0}
        s_waitcnt lgkmcnt(0)
        """)
        s.srd(R_K, P_K, 0x4000000); s.srd(R_V, P_V, 0x4000000); s.srd(R_WS, P_WS, 0x10000000)
        a(f"""
        s_load_dword s{S_B2}, s[{P_B2}:{P_B2+1}], 0
        s_load_dword s{S_TAG}, s[{P_WS}:{P_WS+1}], {EPO}
        s_barrier
        s_cmp_gt_u32 s{S_WAVE}, 1
        s_cbranch_scc1 L_w27
        s_cmp_eq_u32 s{S_WAVE}, 1
        s_cbranch_scc1 L_w1
        """)

    def tag(s):
        s.a(f"s_waitcnt lgkmcnt(0)\ns_mul_i32 s{S_TAG}, s{S_TAG}, 0x9e3779b1\ns_add_u32 s{S_TAG}, s{S_TAG}, 0x7f4a7c15")
    def poll_tag(s, loads, regs, vt, sleep=8, issued=False):
        a = s.a; L = a.newlabel("PT"); D = a.newlabel("PTD"); regs = list(regs)
        if not issued:
            for l in loads: a(l)
        a.label(L)
        a("s_waitcnt vmcnt(0)")
        a(f"v_xor_b32 v{vt}, s{S_TAG}, v{regs[0]}")
        for r in regs[1:]:
            a(f"v_xor_b32 v{vt+1}, s{S_TAG}, v{r}\nv_or_b32 v{vt}, v{vt}, v{vt+1}")
        a(f"v_cmp_ne_u32 vcc, 0, v{vt}")
        if s.fake: a(f"s_branch {D}")
        a(f"s_cbranch_vccz {D}", safe=True)
        if sleep: a(f"s_sleep {sleep}")
        for l in loads: a(l)
        a(f"s_sub_u32 s{S_BUD}, s{S_BUD}, 1")
        a(f"s_cbranch_scc0 {L}", safe=True)
        a(f"s_mov_b32 s{S_BUD}, 0\ns_waitcnt vmcnt(0)")
        a.label(D)

    def give(s, n, vt):
        s.a(f"v_mov_b32 v{vt}, {n}\nv_mov_b32 v{vt+1}, 0\ns_mov_b64 exec, 1\nds_add_u32 v{vt+1}, v{vt} offset:{F_TOK}\ns_mov_b64 exec, -1")

    def tagbytes(s):
        for k in range(4): s.a(f"s_lshr_b32 s{S_TB+k}, s{S_TAG}, {8*k}")
    def tile_addr(s, vo, sbase, stride):
        a = s.a
        a(f"""
        v_lshrrev_b32 v{vo}, 3, v3
        v_lshl_add_u32 v{vo}, v{vo}, 2, v2
        v_mul_u32_u24 v{vo}, {8*stride}, v{vo}
        v_and_b32 v{vo+1}, 7, v3
        v_lshl_add_u32 v{vo}, v{vo+1}, 4, v{vo}
        """)
        for k in range(1, 4): a(f"v_add_u32 v{vo+k}, {64*k*stride}, v{vo}")
        for j in range(8): a(f"s_add_u32 s{M0+j}, s{sbase}, {j*stride}")
    def tile_loads(s, base, ng, vo):
        return [lambda k=k, j=j: s.a(f"buffer_load_dwordx4 {vr(base+32*k+4*j,4)}, v{vo+k}, {sr(R_T,4)}, s{M0+j} offen {s.nt}") for k in range(ng) for j in range(8)]
    def gemv64(s, base, ng, aop, sdst, waits):
        a = s.a; ACC, TMP, R = 20, 52, 4
        n = 0
        pend = None
        for k in range(ng):
            if waits[k] is not None: a(f"s_waitcnt vmcnt({waits[k]})")
            ld = [base + 32 * k + 4 * j for j in range(8)]
            for e in range(8):
                d = TMP + 4 * (n % 3); n += 1
                s.perm_op(d, ld, e)
                if pend: a(pend)
                c = "0" if k == 0 else vr(ACC+4*e, 4)
                pend = f"v_mfma_f32_16x16x32_bf16 {vr(ACC+4*e,4)}, {vr(aop+4*k,4)}, {vr(d,4)}, {c}"
        a(pend)
        a(f"v_lshlrev_b32 v60, 4, v2\nv_and_b32 v60, 16, v60\nv_lshl_add_u32 v60, v3, 5, v60\nv_lshrrev_b32 v61, 5, v1\nv_lshl_add_u32 v60, v61, 8, v60\nv_mov_b32 v61, 0xff")
        for e in range(8):
            for b in range(2):
                a(f"v_add_f32_dpp v{ACC+4*e+b}, v{ACC+4*e+2+b}, v{ACC+4*e+b} row_ror:8 row_mask:0xf bank_mask:0xf")
        for q in range(4):
            a(f"v_cndmask_b32 v52, v{ACC+4*q}, v{ACC+4*(4+q)}, s[{M_H}:{M_H+1}]")
            a(f"v_cndmask_b32 v53, v{ACC+4*q+1}, v{ACC+4*(4+q)+1}, s[{M_H}:{M_H+1}]")
            a(f"v_cndmask_b32 v{56+q}, v52, v53, s[{M_B}:{M_B+1}]")
        for q in range(4): a(f"v_add_u32 v{56+q}, 0x80, v{56+q}")
        for q in range(4): a(f"v_bfi_b32 v{56+q}, v61, s{S_TB+q}, v{56+q}")
        a(f"""
        s_mov_b32 exec_lo, 0x00ff00ff
        s_mov_b32 exec_hi, 0x00ff00ff
        buffer_store_dwordx4 v[56:59], v60, {sr(R_WS,4)}, s{sdst} offen sc1
        s_mov_b64 exec, -1
        """)
    def poll_tb(s, loads, base, vt, sleep=6):
        a = s.a; L = a.newlabel("PB"); D = a.newlabel("PBD"); n = 4 * len(loads)
        a.label(L)
        for l in loads: a(l)
        a("s_waitcnt vmcnt(0)")
        a(f"v_xor_b32 v{vt}, s{S_TB}, v{base}")
        for i in range(1, n):
            a(f"v_bitop3_b32 v{vt}, v{vt}, s{S_TB+(i&3)}, v{base+i} bitop3:0xf6")
        a(f"v_and_b32 v{vt}, 0xff, v{vt}\nv_cmp_ne_u32 vcc, 0, v{vt}")
        if s.fake: a(f"s_branch {D}")
        a(f"s_cbranch_vccz {D}", safe=True)
        a(f"s_sleep {sleep}\ns_sub_u32 s{S_BUD}, s{S_BUD}, 1")
        a(f"s_cbranch_scc0 {L}", safe=True)
        a(f"s_mov_b32 s{S_BUD}, 0")
        a.label(D)
        for i in range(n): a(f"v_and_b32 v{base+i}, 0xffffff00, v{base+i}")
    def reduce4(s, area, slot0):
        a = s.a
        a(f"""
        v_lshrrev_b32 v20, 5, v1
        v_lshlrev_b32 v20, 10, v20
        v_and_b32 v21, 31, v1
        v_lshl_add_u32 v20, v21, 4, v20
        s_lshr_b32 s{S_T2}, s2, 2
        s_lshl_b32 s{S_T1}, s{S_T2}, 11
        s_add_u32 s{S_T1}, s{S_T1}, {area}
        s_waitcnt vmcnt(0)
        """)
        s.poll_tb([f"buffer_load_dwordx4 {vr(24+4*i,4)}, v20, {sr(R_WS,4)}, s{S_T1} offen offset:{512*i} sc1" for i in range(2)], 24, 22)
        for q in range(4): a(f"v_add_f32 v{24+q}, v{24+q}, v{28+q}")
        for q in range(4): s.red_32("add", 24+q, 28+q)
        a(f"""
        v_cvt_pk_bf16_f32 v28, v24, v25
        v_cvt_pk_bf16_f32 v30, v26, v27
        v_mov_b32 v29, s{S_TAG}
        v_mov_b32 v31, s{S_TAG}
        v_mul_u32_u24 v20, {RB}, v2
        v_lshl_add_u32 v20, v3, 4, v20
        s_lshl_b32 s{S_T1}, s{S_T2}, 8
        s_add_u32 s{S_T1}, s{S_T1}, {ROUT + slot0*256}
        s_mov_b32 exec_hi, 0
        buffer_store_dwordx4 v[28:31], v20, {sr(R_WS,4)}, s{S_T1} offen sc1
        s_mov_b32 exec_hi, -1
        """)
    def act_addr(s, vw, vr_):
        s.a(f"""
        s_lshl_b32 s{S_T0}, s{S_WAVE}, 10
        v_lshrrev_b32 v{vw}, 5, v1
        v_lshlrev_b32 v{vw}, 9, v{vw}
        v_and_b32 v{vr_}, 31, v1
        v_lshl_add_u32 v{vw}, v{vr_}, 3, v{vw}
        v_add_u32 v{vw}, s{S_T0}, v{vw}
        v_and_b32 v{vr_}, 1, v3
        v_lshlrev_b32 v{vr_}, 9, v{vr_}
        v_lshl_add_u32 v{vr_}, v2, 4, v{vr_}
        v_add_u32 v{vr_}, s{S_T0}, v{vr_}
        v_and_b32 v{vr_+1}, 2, v3
        v_lshl_add_u32 v{vr_}, v{vr_+1}, 5, v{vr_}
        """)

    def w0(s):
        a = s.a; s.phase = "w0"
        a("s_setprio 3")
        s.srd(R_T, P_WM, 12582912); s.srd(R_U, P_C, 4096)
        a(f"""
        v_lshrrev_b32 v4, 5, v1
        v_lshlrev_b32 v4, 11, v4
        v_and_b32 v5, 31, v1
        v_lshl_add_u32 v4, v5, 3, v4
        s_and_b32 s{S_T2}, s2, 3
        s_lshl_b32 s{S_T0}, s{S_T2}, 9
        buffer_load_dwordx2 v[20:21], v4, {sr(R_U,4)}, s{S_T0} offen
        buffer_load_dwordx2 v[22:23], v4, {sr(R_U,4)}, s{S_T0} offen offset:256
        s_bfe_u32 s{S_STATE}, s2, 0x10002
        s_lshl_b32 s{S_CR}, s{S_T2}, 1
        s_add_u32 s{S_CR}, s{S_CR}, s{S_STATE}
        s_mul_i32 s{S_T0}, s{S_CR}, {128*12288}
        s_lshl_b32 s{S_T1}, s{S_C}, 7
        s_add_u32 s{S_T0}, s{S_T0}, s{S_T1}
        """)
        s.tile_addr(60, S_T0, 12288)
        for l in s.tile_loads(64, 2, 60): l()
        s.stamp(1, "w0")
        s.tag(); s.tagbytes()
        s.act_addr(40, 41)
        a("s_waitcnt vmcnt(16)")
        for i in range(4):
            a(f"v_lshlrev_b32 v{24+2*i}, 16, v{20+i}\nv_and_b32 v{25+2*i}, 0xffff0000, v{20+i}")
        for i in range(8): a(f"v_mul_f32 v{32+i}, s{S_LOG2E}, v{24+i}")
        for i in range(8): a(f"v_exp_f32 v{32+i}, -v{32+i}")
        for i in range(8): a(f"v_add_f32 v{32+i}, 1.0, v{32+i}")
        for i in range(8): a(f"v_rcp_f32 v{32+i}, v{32+i}")
        for i in range(8): a(f"v_mul_f32 v{24+i}, v{24+i}, v{32+i}")
        for i in range(4): a(f"v_cvt_pk_bf16_f32 v{20+i}, v{24+2*i}, v{25+2*i}")
        for i in range(2): a(f"ds_write_b64 v40, {vr(20+2*i,2)} offset:{L_ACT + 256*i}")
        a(f"s_lshl_b32 s{S_T0}, s{S_STATE}, 8\nv_add_u32 v42, s{S_T0}, v41\nv_mov_b32 v255, v41")
        for k in range(2): a(f"ds_read_b128 {vr(4+4*k,4)}, v42 offset:{L_ACT + 128*k}")
        a(f"""
        s_lshl_b32 s{S_T1}, s{S_C}, 3
        s_add_u32 s{S_T1}, s{S_T1}, s{S_CR}
        s_lshl_b32 s{S_T1}, s{S_T1}, 9
        s_add_u32 s{S_T1}, s{S_T1}, {PT1}
        s_waitcnt lgkmcnt(0)
        """)
        s.gemv64(64, 2, 4, S_T1, [8, 0])
        s.stamp(2, "w0")
        for k in range(4): a(f"ds_read_b128 {vr(4+4*k,4)}, v255 offset:{L_ACT + 128*k}")
        a(f"""
        s_setprio 0
        s_mov_b32 s{S_CR}, {4*2-3}
        s_mul_i32 s{S_T0}, s{S_T2}, {256*12288}
        s_lshr_b32 s{S_T1}, s2, 2
        s_lshl_b32 s{S_T1}, s{S_T1}, 7
        s_add_u32 s{S_T0}, s{S_T0}, s{S_T1}
        s_add_u32 s{S_T0}, s{S_T0}, 4096
        """)
        s.tile_addr(64, S_T0, 12288)
        s.paced(s.tile_loads(128, 4, 64), 68)
        s.release(68)
        s.stamp(3, "w0")
        a(f"s_lshl_b32 s{S_T1}, s2, 9\ns_add_u32 s{S_T1}, s{S_T1}, {PTM}")
        s.gemv64(128, 4, 4, S_T1, [24, 16, 8, 0])
        s.stamp(4, "w0")
        a(f"s_add_u32 s{S_T0}, s{S_C}, 2\ns_xor_b32 s{S_T0}, s{S_T0}, s2\ns_and_b32 s{S_T0}, s{S_T0}, 3\ns_cbranch_scc1 L_helper")
        s.reduce4(PTM, 32)
        s.stamp(5, "w0")
        a("s_branch L_helper")

    def w1(s):
        a = s.a; s.phase = "w1"
        a.label("L_w1")
        a("s_setprio 3")
        s.srd(R_T, P_WQ, 8388608)
        a(f"""
        s_and_b32 s{S_T2}, s2, 3
        s_lshl_b32 s{S_T0}, s{S_T2}, 21
        s_lshr_b32 s{S_T1}, s2, 2
        s_lshl_b32 s{S_T1}, s{S_T1}, 7
        s_add_u32 s{S_T0}, s{S_T0}, s{S_T1}
        """)
        s.tile_addr(64, S_T0, 8192)
        s.paced(s.tile_loads(128, 4, 64), 68, ramp=False)
        s.release(68)
        s.stamp(1, "w0")
        s.tag(); s.tagbytes()
        s.act_addr(40, 41)
        a(f"""
        v_lshrrev_b32 v44, 5, v1
        v_mul_u32_u24 v44, {RB}, v44
        v_and_b32 v45, 31, v1
        v_lshl_add_u32 v44, v45, 4, v44
        s_lshl_b32 s{S_T1}, s{S_T2}, 10
        s_sleep 32
        """)
        s.poll_tag([f"buffer_load_dwordx4 {vr(20+4*i,4)}, v44, {sr(R_WS,4)}, s{S_T1} offen offset:{512*i} sc1" for i in range(2)], [21, 23, 25, 27], 46, sleep=8)
        s.stamp(2, "w0")
        for i in range(2):
            a(f"v_mov_b32 v{21+4*i}, v{22+4*i}\nds_write_b64 v40, {vr(20+4*i,2)} offset:{L_ACT + 256*i}")
        for k in range(4): a(f"ds_read_b128 {vr(4+4*k,4)}, v41 offset:{L_ACT + 128*k}")
        a(f"s_lshl_b32 s{S_T1}, s2, 9\ns_add_u32 s{S_T1}, s{S_T1}, {PTQ}\ns_waitcnt lgkmcnt(0)")
        s.gemv64(128, 4, 4, S_T1, [None] * 4)
        s.stamp(3, "w0")
        a(f"s_xor_b32 s{S_T0}, s{S_C}, s2\ns_and_b32 s{S_T0}, s{S_T0}, 3\ns_cbranch_scc1 L_getq")
        s.reduce4(PTQ, 96)
        s.stamp(4, "w0")
        a.label("L_getq")
        a(f"""
        s_lshr_b32 s{S_T0}, s{S_G8}, 2
        s_mul_i32 s{S_T0}, s{S_T0}, {RB}
        s_and_b32 s{S_T1}, s{S_G8}, 3
        s_lshl_b32 s{S_T1}, s{S_T1}, 12
        s_add_u32 s{S_T1}, s{S_T1}, s{S_T0}
        s_add_u32 s{S_T1}, s{S_T1}, {96*256}
        v_lshlrev_b32 v42, 4, v1
        v_lshrrev_b32 v40, 5, v1
        v_and_b32 v41, 31, v1
        v_mul_u32_u24 v43, 272, v40
        v_lshl_add_u32 v43, v41, 3, v43
        """)
        loads = [f"buffer_load_dwordx4 {vr(4+4*i,4)}, v42, {sr(R_WS,4)}, s{S_T1} offen offset:{1024*i} sc1" for i in range(4)]
        a("s_waitcnt vmcnt(0)\ns_sleep 16")
        s.stamp(5, "w0")
        s.poll_tag(loads, range(5, 20, 2), 44, sleep=8)
        for i in range(4):
            a(f"v_mov_b32 v{5+4*i}, v{6+4*i}")
            a(f"ds_write_b64 v43, {vr(4+4*i,2)} offset:{L_Q + 544*i}")
        s.lds_set(F_Q, 1, 44)
        a("s_waitcnt lgkmcnt(0)")
        s.stamp(6, "w0"); s.stamp(1, "pro")
        a("s_setprio 0\ns_branch L_helper")

    def ln_scalars(s, mean, var):
        a = s.a
        s.rnd(mean, mean); s.rnd(var, var)
        a(f"v_add_f32 v{var}, {hexf(1e-5)}, v{var}"); s.rnd(var, var)
        a(f"v_sqrt_f32 v{var}, v{var}"); s.rnd(var, var)
        a(f"v_rcp_f32 v{var}, v{var}")

    def w7(s):
        a = s.a; s.phase = "w7"
        a.label("L_w27")
        s.tag()
        a(f"s_cmp_lg_u32 s{S_WAVE}, 7\ns_cbranch_scc1 L_stream")
        a(f"s_cmp_ge_u32 s2, 32\ns_cbranch_scc1 L_clr")
        a("s_setprio 3")
        s.tagbytes()
        s.srd(R_U, P_X, 4096)
        a(f"""
        v_and_b32 v40, 7, v1
        v_bfe_u32 v41, v1, 3, 1
        v_lshlrev_b32 v42, 11, v41
        v_lshl_add_u32 v43, v40, 3, v42
        v_lshl_add_u32 v42, v2, 9, v42
        v_lshl_add_u32 v42, v40, 6, v42
        s_lshl_b32 s{S_T0}, s2, 6
        """)
        for i in range(4):
            a(f"buffer_load_dwordx4 {vr(84+4*i,4)}, v42, {sr(R_U,4)}, 0 offen offset:{16*i}")
        a(f"buffer_load_dwordx2 v[44:45], v43, {sr(R_U,4)}, s{S_T0} offen")
        a("s_waitcnt vmcnt(0)")
        for i in range(16):
            a(f"v_lshlrev_b32 v{4+2*i}, 16, v{84+i}\nv_and_b32 v{5+2*i}, 0xffff0000, v{84+i}")
        def red_b(x, t):
            for d in ["row_half_mirror", "quad_perm:[2,3,0,1]", "quad_perm:[1,0,3,2]"]:
                a(f"v_add_f32_dpp v{x}, v{x}, v{x} {d} row_mask:0xf bank_mask:0xf")
            s.red_16("add", x, t); s.red_32("add", x, t)
        a("v_add_f32 v104, v4, v5")
        for i in range(2, 32): a(f"v_add_f32 v104, v104, v{4+i}")
        red_b(104, 105)
        a(f"v_mul_f32 v104, {hexf(1/1024)}, v104\nv_mov_b32 v106, 0")
        for i in range(32):
            a(f"v_sub_f32 v105, v{4+i}, v104\nv_fmac_f32 v106, v105, v105")
        red_b(106, 105)
        a(f"v_mul_f32 v106, {hexf(1/1024)}, v106")
        s.ln_scalars(104, 106)
        for i in range(2):
            a(f"v_lshlrev_b32 v{52+2*i}, 16, v{44+i}\nv_and_b32 v{53+2*i}, 0xffff0000, v{44+i}")
        for i in range(4): a(f"v_sub_f32 v{52+i}, v{52+i}, v104")
        for i in range(4): s.rnd(52+i, 52+i)
        for i in range(4): a(f"v_mul_f32 v{52+i}, v{52+i}, v106")
        for i in range(4): s.rnd(52+i, 52+i)
        a(f"""
        v_and_b32 v42, 1, v2
        v_lshlrev_b32 v42, 16, v42
        v_lshrrev_b32 v43, 5, v1
        v_lshl_add_u32 v42, v43, 11, v42
        v_lshl_add_u32 v42, v41, 8, v42
        v_lshl_add_u32 v42, v40, 4, v42
        s_lshr_b32 s{S_T1}, s2, 1
        s_lshl_b32 s{S_T1}, s{S_T1}, 12
        s_and_b32 s{S_T0}, s2, 1
        s_lshl_b32 s{S_T0}, s{S_T0}, 7
        s_add_u32 s{S_T1}, s{S_T1}, s{S_T0}
        s_add_u32 s{S_T1}, s{S_T1}, {PT1}
        """)
        s.stamp(1, "w0")
        s.poll_tb([f"buffer_load_dwordx4 {vr(4+4*i,4)}, v42, {sr(R_WS,4)}, s{S_T1} offen offset:{512*i} sc1" for i in range(4)], 4, 46, sleep=4)
        s.stamp(2, "w0")
        for q in range(4):
            a(f"v_add_f32 v{4+q}, v{4+q}, v{8+q}\nv_add_f32 v{12+q}, v{12+q}, v{16+q}")
        for q in range(4): a(f"v_add_f32 v{4+q}, v{4+q}, v{12+q}")
        for q in range(4): s.red_32("add", 4+q, 8+q)
        for q in range(4): s.rnd(4+q, 4+q)
        for q in range(4): a(f"v_mov_b32 v{8+q}, v{4+q}")
        for q in range(4): a(f"v_permlane16_swap_b32 v{4+q}, v{8+q}")
        for q in range(4): a(f"v_add_f32 v{8+q}, 1.0, v{8+q}")
        for q in range(4): s.rnd(8+q, 8+q)
        for q in range(4): a(f"v_mul_f32 v{52+q}, v{52+q}, v{8+q}")
        for q in range(4): s.rnd(52+q, 52+q)
        for q in range(4): a(f"v_add_f32 v{52+q}, v{52+q}, v{4+q}")
        a(f"""
        v_cvt_pk_bf16_f32 v56, v52, v53
        v_cvt_pk_bf16_f32 v58, v54, v55
        v_mov_b32 v57, s{S_TAG}
        v_mov_b32 v59, s{S_TAG}
        v_mul_u32_u24 v42, {RB}, v41
        v_lshl_add_u32 v42, v40, 4, v42
        s_lshl_b32 s{S_T0}, s2, 7
        s_mov_b64 exec, 0xffff
        buffer_store_dwordx4 v[56:59], v42, {sr(R_WS,4)}, s{S_T0} offen sc1
        s_mov_b64 exec, -1
        s_setprio 0
        """)
        s.stamp(3, "w0")
        a.label("L_clr")
        a(f"""
        v_mov_b32 v120, -1
        v_mov_b32 v121, -1
        v_mov_b32 v122, -1
        v_mov_b32 v123, -1
        v_lshlrev_b32 v124, 4, v1
        s_mul_i32 s{S_T0}, s2, 2624
        s_add_u32 s{S_T0}, s{S_T0}, {SA}
        buffer_store_dwordx4 v[120:123], v124, {sr(R_WS,4)}, s{S_T0} offen sc1
        buffer_store_dwordx4 v[120:123], v124, {sr(R_WS,4)}, s{S_T0} offen offset:1024 sc1
        s_mov_b32 exec_hi, 15
        buffer_store_dwordx4 v[120:123], v124, {sr(R_WS,4)}, s{S_T0} offen offset:2048 sc1
        v_mov_b32 v126, s{S_TAG}
        s_lshl_b32 s{S_T0}, s2, 2
        s_add_u32 s{S_T0}, s{S_T0}, {FLG}
        s_mov_b64 exec, 1
        s_waitcnt vmcnt(0)
        buffer_store_dword v126, v124, {sr(R_WS,4)}, s{S_T0} offen sc1
        s_mov_b64 exec, -1
        """)
        assert 2624 * 256 == ML + 0x4000 - SA

    def vload(s, i, reg):
        u, j = i >> 3, i & 7
        if (j & 3) == 0: s.a(f"s_add_u32 s{S_T1}, s{S_KV}, {(32 * u + 16 * (j >> 2)) * 256}")
        s.a(f"buffer_load_dwordx4 {vr(reg,4)}, v5, {sr(R_V,4)}, s{S_T1} offen offset:{(8*((j>>1)&1) + (j&1))*256} {s.nt}")

    def stream(s):
        a = s.a; s.phase = "stream"
        VREG = [48 + 4 * i for i in range(20)] + [160 + 4 * i for i in range(12)]
        SREG = [16, 20] + [128 + 4 * i for i in range(6)]
        Q, WO, O, TMP = 24, 208, 224, 24
        RAW = list(range(40, 48)) + list(range(152, 156)); XF = 156
        s.VREG, s.SREG, s.WO, s.O, s.RAW, s.XF = VREG, SREG, WO, O, RAW, XF
        addr = f"""
        v_lshrrev_b32 v4, 1, v3
        v_lshlrev_b32 v4, 8, v4
        v_lshl_add_u32 v4, v2, 5, v4
        v_and_b32 v5, 1, v3
        v_lshl_add_u32 v4, v5, 4, v4
        v_lshlrev_b32 v5, 9, v2
        v_lshl_add_u32 v5, v3, 4, v5
        s_mov_b32 s{S_STATE}, 0
        """
        a.label("L_stream")
        a(addr)
        a(f"s_lshl_b32 s{S_CR}, s{S_WAVE}, 2\ns_sub_u32 s{S_CR}, s{S_CR}, 3\ns_cmp_eq_u32 s{S_WAVE}, 2\ns_cselect_b32 s{S_CR}, 1, s{S_CR}")
        def kload(t, k):
            if k == 0: a(f"s_add_u32 s{S_T1}, s{S_KV}, {4096*t}")
            a(f"buffer_load_dwordx4 {vr(128+16*t+4*k,4)}, v4, {sr(R_K,4)}, s{S_T1} offen offset:{KOFF[k]} {s.nt}")
        def kdma(t, k):
            if k == 0: a(f"s_add_u32 s{S_T1}, s{S_KV}, {4096*t - 65536}")
            a(f"s_add_u32 m0, s{S_T2}, {1024*(4*t+k) - KOFF[k]}")
            a(f"buffer_load_dwordx4 v4, {sr(R_K,4)}, s{S_T1} offen offset:{KOFF[k]} {s.nt} lds")
        s.credit(6)
        s.stamp(1, "str")
        s.paced([lambda t=t, k=k: kload(t, k) for t in range(8) for k in range(4)], 6, skip_first=True)
        a(f"s_cmp_gt_u32 s{S_WAVE}, 3\ns_cbranch_scc1 L_nodma")
        a(f"s_lshl_b32 s{S_T2}, s{S_WAVE}, 15\ns_add_u32 s{S_T2}, s{S_T2}, {L_KB - 65536}")
        s.paced([lambda t=t, k=k: kdma(t, k) for t in range(8) for k in range(4)], 6, start=32)
        a.label("L_nodma")
        s.stamp(2, "str")
        s.release(6)
        a(f"s_cmp_gt_u32 s{S_WAVE}, 2\ns_cbranch_scc1 L_vtick")
        s.lds_wait(F_Q, 1, 6)
        a(f"s_mov_b32 s{S_STATE}, 1\ns_waitcnt vmcnt(0)\ns_branch L_qk")
        a.label("L_helper")
        a(addr)
        a.label("L_vtick")
        s.ticket(6)
        a(f"""
        s_lshl_b32 s{S_T0}, s{S_WAVE}, 2
        s_add_u32 s{S_T0}, s{S_T0}, {F_K}
        s_cmp_lt_u32 s{S_WAVE}, 2
        s_cselect_b32 s{S_T0}, s{S_T0}, {F_Q}
        v_mov_b32 v9, s{S_T0}
        """)
        a.label("L_waitv")
        a(f"""
        v_mov_b32 v8, 0
        ds_read_b32 v6, v8 offset:{F_TOK}
        ds_read_b32 v7, v9
        s_waitcnt lgkmcnt(0)
        v_readfirstlane_b32 s{S_T0}, v6
        v_readfirstlane_b32 s{S_T1}, v7
        s_cmp_ge_u32 s{S_T0}, s{S_CR}
        s_cbranch_scc1 L_issuev
        s_cmp_gt_u32 s{S_T1}, s{S_STATE}
        s_cbranch_scc0 L_waitv2
        s_mov_b32 s{S_STATE}, 1
        s_waitcnt vmcnt(0)
        s_branch L_hk
        """)
        a.label("L_waitv2")
        a(f"""
        s_sleep 1
        s_sub_u32 s{S_BUD}, s{S_BUD}, 1
        s_cbranch_scc0 L_waitv
        s_mov_b32 s{S_BUD}, 0
        """)
        a.label("L_issuev")
        a(f"s_add_u32 s{S_CR}, s{S_CR}, 1")
        s.stamp(3, "str")
        s.paced([lambda i=i: s.vload(i, VREG[i]) for i in range(20)], 6, skip_first=True)
        s.stamp(4, "str")
        a(f"s_cmp_eq_u32 s{S_STATE}, 1\ns_cbranch_scc0 L_part")
        s.paced([lambda i=i: s.vload(i, VREG[i]) for i in range(20, 32)], 6, start=20, ramp=False)
        a("s_branch L_late2")
        a.label("L_part")
        s.release(6)
        W = a.newlabel("HK")
        a.label(W)
        a(f"""
        ds_read_b32 v6, v9
        s_waitcnt lgkmcnt(0)
        v_readfirstlane_b32 s{S_T0}, v6
        s_cmp_lg_u32 s{S_T0}, 0
        s_cbranch_scc1 L_hk
        s_sleep 2
        s_sub_u32 s{S_BUD}, s{S_BUD}, 1
        s_cbranch_scc0 {W}
        s_mov_b32 s{S_BUD}, 0
        """)
        a.label("L_hk")
        a(f"s_cmp_gt_u32 s{S_WAVE}, 1\ns_cbranch_scc1 L_qk")
        a(f"s_lshl_b32 s{S_T0}, s{S_WAVE}, 15\ns_add_u32 s{S_T0}, s{S_T0}, {L_KB}\nv_lshl_add_u32 v7, v1, 4, s{S_T0}")
        for i in range(32):
            a(f"ds_read_b128 {vr(128+4*i,4)}, v7 offset:{1024*i}")
            if i % 8 == 7: a("s_waitcnt lgkmcnt(0)")
        a.label("L_qk")
        a(f"s_sub_u32 s{S_T0}, s{S_WAVE}, 2\ns_cmp_gt_u32 s{S_T0}, 1\ns_cbranch_scc1 L_qk2")
        a(f"s_lshl_b32 s{S_T0}, s{S_T0}, 2\nv_mov_b32 v7, s{S_T0}\nv_mov_b32 v6, 1\nds_write_b32 v7, v6 offset:{F_K}")
        a.label("L_qk2")
        a(f"""
        v_and_b32 v6, 7, v3
        v_mul_u32_u24 v7, 272, v6
        v_lshl_add_u32 v7, v2, 5, v7
        v_lshrrev_b32 v8, 3, v3
        v_lshl_add_u32 v7, v8, 4, v7
        """)
        for k in range(2):
            a(f"ds_read_b128 {vr(Q+4*k,4)}, v7 offset:{L_Q + 128*k}")
        a("s_waitcnt lgkmcnt(0)")
        def fold(t):
            acc = 32 + 8 * (t & 1)
            for x in range(2):
                for h in range(2):
                    a(f"v_add_f32_dpp v{SREG[t]+2*x+h}, v{acc+4*x+2*h+1}, v{acc+4*x+2*h} row_ror:8 row_mask:0xf bank_mask:0xf")
        for t in range(8):
            acc = 32 + 8 * (t & 1)
            for hh in range(2):
                for x in range(2):
                    c = "0" if hh == 0 else vr(acc+4*x, 4)
                    a(f"v_mfma_f32_16x16x32_bf16 {vr(acc+4*x,4)}, {vr(128+16*t+8*x+4*hh,4)}, {vr(Q+4*hh,4)}, {c}")
            if t: fold(t - 1)
        fold(7)
        allS = [SREG[t] + r for t in range(8) for r in range(4)]
        for x in allS: s.rnd(x, x)
        for x in allS: a(f"v_mul_f32 v{x}, s{S_SCALE}, v{x}")
        for x in allS: s.rnd(x, x)
        a(f"v_max3_f32 v12, v{allS[0]}, v{allS[1]}, v{allS[2]}")
        for i in range(3, 31, 2): a(f"v_max3_f32 v12, v12, v{allS[i]}, v{allS[i+1]}")
        a(f"v_max_f32 v12, v12, v{allS[31]}")
        s.red_16("max", 12, 13); s.red_32("max", 12, 13)
        a(f"v_mul_f32 v14, s{S_LOG2E}, v12")
        for x in allS: a(f"v_fma_f32 v{x}, v{x}, s{S_LOG2E}, -v14")
        for x in allS: a(f"v_exp_f32 v{x}, v{x}")
        a(f"v_add_f32 v13, v{allS[0]}, v{allS[1]}")
        for x in allS[2:]: a(f"v_add_f32 v13, v13, v{x}")
        s.red_16("add", 13, 14); s.red_32("add", 13, 14)
        a(f"""
        s_lshl_b32 s{S_T0}, s{S_WAVE}, 6
        v_lshl_add_u32 v14, v1, 3, s{S_T0}
        v_mov_b32 v15, 1
        v_mov_b32 v7, 0
        s_mov_b64 exec, 0xff
        ds_write_b64 v14, v[12:13] offset:{L_ST}
        s_mov_b64 exec, 1
        ds_add_u32 v7, v15 offset:{F_CNT}
        s_mov_b64 exec, -1
        """)
        s.stamp(4, "pro")
        a("v_lshlrev_b32 v13, 2, v0\nv_lshlrev_b32 v10, 1, v0")
        for ai, p in enumerate([P_W1, P_B1, P_W2]):
            s.srd(R_U, p, 7168)
            a(f"s_movk_i32 s{S_T0}, 0x1000")
            a(f"buffer_load_dword v{RAW[4*ai]}, v13, {sr(R_U,4)}, 0 offen")
            a(f"buffer_load_dword v{RAW[4*ai+1]}, v13, {sr(R_U,4)}, 0 offen offset:2048")
            a(f"buffer_load_dword v{RAW[4*ai+2]}, v13, {sr(R_U,4)}, s{S_T0} offen")
            a(f"buffer_load_ushort v{RAW[4*ai+3]}, v10, {sr(R_U,4)}, s{S_T0} offen offset:2048")
        s.srd(R_U, P_X, 4096)
        a(f"""
        v_and_b32 v11, 31, v1
        v_lshlrev_b32 v11, 2, v11
        v_lshrrev_b32 v12, 5, v1
        v_lshl_add_u32 v11, v12, 1, v11
        s_lshl_b32 s{S_T0}, s{S_WAVE}, 7
        v_add_u32 v11, s{S_T0}, v11
        v_lshlrev_b32 v12, 1, v11
        s_and_b32 s{S_T0}, s2, 1
        s_lshl_b32 s{S_T0}, s{S_T0}, 11
        buffer_load_dword v{XF}, v12, {sr(R_U,4)}, s{S_T0} offen
        """)
        s.warm_code(157)
        s.MODR = 32
        a(f"""
        v_lshlrev_b32 v10, 2, v11
        s_and_b32 s{M0+8}, s2, 1
        s_mul_i32 s{M0+8}, s{M0+8}, {RB}
        s_add_u32 s{M0+8}, s{M0+8}, {32*256}
        s_add_u32 s{M0+9}, s{M0+8}, 4096
        s_add_u32 s{M0+10}, s{M0+8}, 8192
        s_add_u32 s{M0+11}, s{M0+8}, 12288
        """)
        s.modloads = [f"buffer_load_dwordx2 {vr(s.MODR+2*i,2)}, v10, {sr(R_WS,4)}, s{M0+8+i} offen sc1" for i in range(4)]
        for l in s.modloads: a(l)
        a(f"s_cmp_eq_u32 s{S_WAVE}, 2\ns_cbranch_scc1 L_w2")
        a(f"s_cmp_eq_u32 s{S_STATE}, 1\ns_cbranch_scc1 L_waitv")
        s.ticket(6)
        s.paced([lambda i=i: s.vload(i, VREG[i]) for i in range(20, 32)], 6)
        a.label("L_late2")
        a(f"v_mov_b32 v6, 1\nv_mov_b32 v7, 0\ns_mov_b64 exec, 1\nds_add_u32 v7, v6 offset:{F_VD}\ns_mov_b64 exec, -1")
        s.release(6)
        a("v_and_b32 v6, 7, v3")
        s.stamp(5, "pro"); s.stamp(5, "str")
        a.label("L_pv")
        s.lds_wait(F_F, 1, 12)
        a(f"""
        s_lshl_b32 s{S_T0}, s{S_WAVE}, 5
        v_lshl_add_u32 v14, v6, 2, s{S_T0}
        ds_read_b32 v12, v14 offset:{L_F}
        s_waitcnt lgkmcnt(0)
        """)
        for x in allS: a(f"v_mul_f32 v{x}, v{x}, v12")
        for u in range(4):
            A_, B_ = SREG[2*u], SREG[2*u+1]
            a(f"v_cvt_pk_bf16_f32 v{A_}, v{A_}, v{A_+1}\nv_cvt_pk_bf16_f32 v{A_+1}, v{A_+2}, v{A_+3}")
            a(f"v_cvt_pk_bf16_f32 v{A_+2}, v{B_}, v{B_+1}\nv_cvt_pk_bf16_f32 v{A_+3}, v{B_+2}, v{B_+3}")
        k = 0
        for u in range(4):
            a(f"s_waitcnt vmcnt({24-8*u})")
            ld = VREG[8*u:8*u+8]
            for e in range(8):
                d = TMP + 4 * (k & 1); k += 1
                s.perm_op(d, ld, e)
                c = "0" if u == 0 else vr(O+4*e, 4)
                a(f"v_mfma_f32_16x16x32_bf16 {vr(O+4*e,4)}, {vr(d,4)}, {vr(SREG[2*u],4)}, {c}")
        a(f"""
        s_mul_i32 s{S_T0}, s{S_WAVE}, {SLAB}
        v_lshlrev_b32 v12, 7, v2
        v_lshl_add_u32 v12, v3, 4, v12
        v_add_u32 v12, s{S_T0}, v12
        s_mov_b32 exec_lo, 0x00ff00ff
        s_mov_b32 exec_hi, 0x00ff00ff
        """)
        for e in range(8):
            a(f"ds_write_b128 v12, {vr(O+4*e,4)} offset:{L_SLAB + 528*e}")
        a("s_mov_b64 exec, -1")
        if s.wolast: s.lds_wait(F_VD, 8, 6, sleep=1)
        s.srd(R_T, P_WO, 8388608)
        a(f"""
        v_lshlrev_b32 v8, 12, v2
        v_lshl_add_u32 v8, v3, 3, v8
        s_lshl_b32 s{S_T0}, s{S_G8}, 1
        s_and_b32 s{S_T1}, s{S_C}, 1
        s_add_u32 s{S_T0}, s{S_T0}, s{S_T1}
        s_lshl_b32 s{S_T0}, s{S_T0}, 3
        s_add_u32 s{S_T0}, s{S_T0}, s{S_WAVE}
        s_lshl_b32 s{S_T2}, s{S_T0}, 16
        s_lshr_b32 s{S_T1}, s2, 4
        s_lshl_b32 s{S_T1}, s{S_T1}, 7
        s_add_u32 s{S_T2}, s{S_T2}, s{S_T1}
        """)
        for j in range(8):
            a(f"s_add_u32 s{S_T1}, s{S_T2}, {8*(j&3)*2048}")
            a(f"buffer_load_dwordx2 {vr(WO+2*j,2)}, v8, {sr(R_T,4)}, s{S_T1} offen offset:{(j>>2)*2048} {s.nt}")
        a.label("L_tail")

    def w2(s):
        a = s.a; s.phase = "w2"
        a.label("L_w2")
        a(f"v_lshlrev_b32 v14, 4, v1\ns_mov_b32 s{S_T2}, {FLG}")
        s.poll_tag([f"buffer_load_dwordx4 v[224:227], v14, {sr(R_WS,4)}, s{S_T2} offen sc1"], range(224, 228), 12)
        s.lds_wait(F_CNT, 8, 12)
        T = 224
        a(f"""
        v_lshlrev_b32 v14, 3, v1
        ds_read_b64 v[12:13], v14 offset:{L_ST}
        s_waitcnt lgkmcnt(0)
        v_mov_b32 v{T}, v12
        """)
        s.red_row("max", T, [8]); s.red_16("max", T, T+2); s.red_32("max", T, T+2)
        a(f"""
        v_sub_f32 v{T+1}, v12, v{T}
        v_mul_f32 v{T+1}, s{S_LOG2E}, v{T+1}
        v_exp_f32 v{T+1}, v{T+1}
        v_mul_f32 v{T+1}, v{T+1}, v13
        """)
        s.red_row("add", T+1, [8]); s.red_16("add", T+1, T+2); s.red_32("add", T+1, T+2)
        a(f"""
        v_min_u32 v{T}, -2, v{T}
        v_min_u32 v{T+1}, -2, v{T+1}
        s_lshl_b32 s{S_T2}, s{S_G8}, 11
        s_add_u32 s{S_T2}, s{S_T2}, {ML}
        s_lshl_b32 s{S_T0}, s{S_C}, 6
        s_add_u32 s{S_T0}, s{S_T0}, s{S_T2}
        s_mov_b64 exec, 0xff
        buffer_store_dwordx2 {vr(T,2)}, v14, {sr(R_WS,4)}, s{S_T0} offen sc1
        s_mov_b64 exec, -1
        """)
        G_ = T + 4
        a("s_waitcnt vmcnt(0)")
        s.poll_all([f"buffer_load_dwordx2 {vr(G_+2*i,2)}, v14, {sr(R_WS,4)}, s{S_T2} offen offset:{512*i} sc1" for i in range(4)],
                   range(G_, G_ + 8), T + 2, sleep=12)
        a(f"v_max3_f32 v{T}, v{G_}, v{G_+2}, v{G_+4}\nv_max_f32 v{T}, v{T}, v{G_+6}")
        s.red_row("max", T, [8]); s.red_16("max", T, T+2); s.red_32("max", T, T+2)
        for i in range(4):
            a(f"v_sub_f32 v{G_+2*i}, v{G_+2*i}, v{T}\nv_mul_f32 v{G_+2*i}, s{S_LOG2E}, v{G_+2*i}\nv_exp_f32 v{G_+2*i}, v{G_+2*i}")
        a(f"v_mul_f32 v{T+1}, v{G_}, v{G_+1}")
        for i in range(1, 4): a(f"v_fmac_f32 v{T+1}, v{G_+2*i}, v{G_+2*i+1}")
        s.red_row("add", T+1, [8]); s.red_16("add", T+1, T+2); s.red_32("add", T+1, T+2)
        a(f"""
        v_rcp_f32 v{T+1}, v{T+1}
        v_sub_f32 v12, v12, v{T}
        v_mul_f32 v12, s{S_LOG2E}, v12
        v_exp_f32 v12, v12
        v_mul_f32 v12, v12, v{T+1}
        v_lshlrev_b32 v14, 2, v1
        ds_write_b32 v14, v12 offset:{L_F}
        """)
        s.lds_set(F_F, 1, T)
        s.stamp(1, "pro")
        a("s_branch L_vtick")

    def ln_reduce(s, x0, x1, area, t):
        a = s.a
        a(f"""
        v_readfirstlane_b32 s{S_T0}, v{x0}
        v_subrev_f32 v{t+2}, s{S_T0}, v{x0}
        v_subrev_f32 v{t+3}, s{S_T0}, v{x1}
        v_add_f32 v{t}, v{t+2}, v{t+3}
        v_mul_f32 v{t+1}, v{t+2}, v{t+2}
        v_fmac_f32 v{t+1}, v{t+3}, v{t+3}
        """)
        for k in [8, 4, 2, 1]:
            s.red_row("add", t, [k]); s.red_row("add", t+1, [k])
        a(f"""
        v_permlane16_swap_b32 v{t}, v{t+1}
        v_add_f32 v{t}, v{t}, v{t+1}
        """)
        s.red_32("add", t, t+1)
        a(f"""
        v_mov_b32 v{t+1}, v{t}
        v_permlane16_swap_b32 v{t}, v{t+1}
        """)
        a(f"""
        v_mul_f32 v{t+2}, {hexf(1/128)}, v{t}
        v_fma_f32 v{t+1}, -v{t+2}, v{t}, v{t+1}
        v_add_f32 v{t}, s{S_T0}, v{t+2}
        s_lshl_b32 s{S_T1}, s{S_WAVE}, 3
        v_mov_b32 v{t+2}, s{S_T1}
        s_mov_b64 exec, 1
        ds_write_b64 v{t+2}, {vr(t,2)} offset:{area}
        s_mov_b64 exec, -1
        v_and_b32 v{t+2}, 7, v1
        v_lshlrev_b32 v{t+2}, 3, v{t+2}
        s_waitcnt lgkmcnt(0)
        s_barrier
        ds_read_b64 {vr(t,2)}, v{t+2} offset:{area}
        """)
    def ln_finish(s, t):
        a = s.a
        dpp8 = ["row_half_mirror", "quad_perm:[2,3,0,1]", "quad_perm:[1,0,3,2]"]
        a(f"v_mov_b32 v{t+2}, v{t}")
        for d in dpp8: a(f"v_add_f32_dpp v{t+2}, v{t+2}, v{t+2} {d} row_mask:0xf bank_mask:0xf")
        a(f"""
        v_mul_f32 v{t+2}, {hexf(0.125)}, v{t+2}
        v_sub_f32 v{t}, v{t}, v{t+2}
        v_mul_f32 v{t}, v{t}, v{t}
        v_fmamk_f32 v{t+1}, v{t}, {hexf(128.0)}, v{t+1}
        """)
        for d in dpp8: a(f"v_add_f32_dpp v{t+1}, v{t+1}, v{t+1} {d} row_mask:0xf bank_mask:0xf")
        a(f"v_mul_f32 v{t+1}, {hexf(1/1024)}, v{t+1}\nv_mov_b32 v{t}, v{t+2}")
        s.ln_scalars(t, t+1)

    def tail(s):
        a = s.a; s.phase = "tail"
        WO, RAW, XF = s.WO, s.RAW, s.XF
        a("s_waitcnt lgkmcnt(0)\ns_barrier")
        s.stamp(6, "pro"); s.stamp(1, "tail"); s.stamp(6, "str"); s.stamp(1, "dbg"); s.stamp(1, "x2b")
        a(f"s_cmp_ge_u32 s{S_WAVE}, 4\ns_cbranch_scc1 L_nopub")
        a(f"""
        v_and_b32 v12, 7, v0
        v_bfe_u32 v13, v0, 3, 2
        v_lshrrev_b32 v14, 5, v0
        v_mul_u32_u24 v15, 528, v12
        v_lshl_add_u32 v15, v13, 7, v15
        v_lshl_add_u32 v15, v14, 4, v15
        """)
        for w in range(8):
            a(f"ds_read_b128 {vr(48+4*w,4)}, v15 offset:{L_SLAB + SLAB*w}")
        a(f"""
        v_lshlrev_b32 v16, 14, v14
        v_lshl_add_u32 v16, v13, 12, v16
        v_lshl_add_u32 v16, v12, 3, v16
        s_and_b32 s{S_T0}, s{S_G8}, 3
        s_lshl_b32 s{S_T0}, s{S_T0}, 17
        s_lshr_b32 s{S_T1}, s{S_G8}, 2
        s_lshl_b32 s{S_T1}, s{S_T1}, 11
        s_add_u32 s{S_T0}, s{S_T0}, s{S_T1}
        s_lshl_b32 s{S_T1}, s{S_C}, 6
        s_add_u32 s{S_T0}, s{S_T0}, s{S_T1}
        s_add_u32 s{S_T0}, s{S_T0}, {H1}
        s_waitcnt lgkmcnt(0)
        """)
        for (x, y) in [(0,1),(2,3),(4,5),(6,7),(0,2),(4,6),(0,4)]:
            for h in range(2):
                a(f"v_pk_add_f32 {vr(48+4*x+2*h,2)}, {vr(48+4*x+2*h,2)}, {vr(48+4*y+2*h,2)}")
        a(f"""
        v_cvt_pk_bf16_f32 v52, v48, v49
        v_cvt_pk_bf16_f32 v53, v50, v51
        v_min_u32 v52, -2, v52
        v_min_u32 v53, -2, v53
        buffer_store_dwordx2 v[52:53], v16, {sr(R_WS,4)}, s{S_T0} offen sc1
        """)
        a.label("L_nopub")
        WB = 128
        a(f"""
        v_and_b32 v12, 1, v3
        v_lshlrev_b32 v12, 11, v12
        v_lshrrev_b32 v13, 1, v3
        v_lshl_add_u32 v12, v13, 6, v12
        v_lshl_add_u32 v12, v2, 4, v12
        s_lshl_b32 s{S_T0}, s{S_G8}, 1
        s_and_b32 s{S_T1}, s{S_C}, 1
        s_add_u32 s{S_T0}, s{S_T0}, s{S_T1}
        s_lshl_b32 s{S_T2}, s{S_T0}, 3
        s_add_u32 s{S_T2}, s{S_T2}, s{S_WAVE}
        s_lshl_b32 s{S_T2}, s{S_T2}, 12
        s_add_u32 s{S_T2}, s{S_T2}, {H1}
        """)
        CO = 160
        a(f"s_mov_b32 s{S_T0}, {hexf(K1)}\nv_mov_b32 v20, {hexf(K0)}")
        for k in range(7):
            for ai, d in enumerate([16, 17, 18]):
                src = RAW[4*ai + k//2]
                if k & 1: a(f"v_and_b32 v{d}, 0xffff0000, v{src}")
                else: a(f"v_lshlrev_b32 v{d}, 16, v{src}")
            c = CO + 6 * k
            a(f"""
            v_mul_f32 v19, v17, v17
            v_mul_f32 v19, s{S_T0}, v19
            v_add_f32 v{c}, v20, v19
            v_mul_f32 v{c}, v{c}, v17
            v_fmamk_f32 v{c+1}, v19, {hexf(3.0)}, v20
            v_mul_f32 v{c+1}, v{c+1}, v16
            v_mul_f32 v19, v16, v16
            v_mul_f32 v19, s{S_T0}, v19
            v_mul_f32 v{c+3}, v19, v16
            v_mul_f32 v19, v19, v17
            v_mul_f32 v{c+2}, {hexf(3.0)}, v19
            v_mul_f32 v{c+4}, v17, v18
            v_mul_f32 v{c+5}, v16, v18
            """)
        s.poll_tag(s.modloads, [s.MODR+1, s.MODR+3, s.MODR+5, s.MODR+7], 16, issued=True)
        for i in range(3):
            a(f"v_lshlrev_b32 v{40+2*i}, 16, v{s.MODR+2*i}\nv_and_b32 v{41+2*i}, 0xffff0000, v{s.MODR+2*i}")
        a(f"""
        v_lshlrev_b32 v46, 16, v{XF}
        v_and_b32 v47, 0xffff0000, v{XF}
        v_add_f32 v44, 1.0, v44
        v_add_f32 v45, 1.0, v45
        v_lshlrev_b32 v202, 16, v{s.MODR+6}
        v_and_b32 v203, 0xffff0000, v{s.MODR+6}
        v_lshlrev_b32 v13, 2, v11
        v_add_u32 v13, {L_HL}, v13
        ds_write_b64 v13, v[202:203] offset:{L_GB-L_HL}
        """)
        s.rnd(44, 44); s.rnd(45, 45)
        ld = [WO + 2 * j for j in range(8)]
        for e in range(4): s.perm_op(WB + 4 * e, ld, e)
        s.poll_masked([(f"buffer_load_dwordx4 {vr(48+4*t,4)}, v12, {sr(R_WS,4)}, s{S_T2} offen offset:{512*t} sc1", range(48+4*t, 52+4*t)) for t in range(4)], 16)
        s.stamp(2, "tail")
        ACC = 64
        for t in range(4):
            for e in range(4):
                c = "0" if t == 0 else vr(ACC+4*e, 4)
                a(f"v_mfma_f32_16x16x32_bf16 {vr(ACC+4*e,4)}, {vr(48+4*t,4)}, {vr(WB+4*e,4)}, {c}")
        a(f"""
        s_lshl_b32 s{S_T0}, s{S_WAVE}, 10
        v_lshl_add_u32 v12, v1, 4, s{S_T0}
        """)
        for e in range(4):
            a(f"v_pk_add_f32 {vr(ACC+4*e,2)}, {vr(ACC+4*e,2)}, {vr(ACC+4*e+2,2)}")
        for e in range(4):
            a(f"v_permlane32_swap_b32 v{ACC+4*e}, v{ACC+4*e+1}")
        for e in range(4):
            a(f"v_add_f32 v{80+e}, v{ACC+4*e}, v{ACC+4*e+1}")
        a(f"""
        ds_write_b128 v12, v[80:83] offset:{L_S2}
        s_waitcnt lgkmcnt(0)
        s_barrier
        s_cmp_lg_u32 s{S_WAVE}, 0
        s_cbranch_scc1 L_nopub2
        """)
        for w in range(8):
            a(f"ds_read_b128 {vr(48+4*w,4)}, v12 offset:{L_S2 + 1024*w}")
        a(f"""
        v_lshrrev_b32 v13, 5, v1
        v_lshlrev_b32 v13, 16, v13
        v_lshl_add_u32 v13, v3, 4, v13
        s_lshl_b32 s{S_T0}, s{S_G8}, 1
        s_and_b32 s{S_T1}, s{S_C}, 1
        s_add_u32 s{S_T0}, s{S_T0}, s{S_T1}
        s_lshl_b32 s{S_T0}, s{S_T0}, 12
        s_lshr_b32 s{S_T1}, s2, 4
        s_lshl_b32 s{S_T1}, s{S_T1}, 8
        s_add_u32 s{S_T0}, s{S_T0}, s{S_T1}
        s_add_u32 s{S_T0}, s{S_T0}, {AP}
        s_waitcnt lgkmcnt(0)
        """)
        for (x, y) in [(0,1),(2,3),(4,5),(6,7),(0,2),(4,6),(0,4)]:
            for h in range(2):
                a(f"v_pk_add_f32 {vr(48+4*x+2*h,2)}, {vr(48+4*x+2*h,2)}, {vr(48+4*y+2*h,2)}")
        for q in range(4): a(f"v_mov_b32 v{52+q}, v{48+q}")
        for q in range(4): a(f"v_permlane16_swap_b32 v{48+q}, v{52+q}")
        for q in range(4): a(f"v_add_f32 v{48+q}, v{48+q}, v{52+q}")
        for q in range(4): a(f"v_min_u32 v{48+q}, -2, v{48+q}")
        a(f"""
        s_mov_b32 exec_lo, 0x0000ffff
        s_mov_b32 exec_hi, 0x0000ffff
        buffer_store_dwordx4 v[48:51], v13, {sr(R_WS,4)}, s{S_T0} offen sc1
        s_mov_b64 exec, -1
        s_nop 1
        """)
        a.label("L_nopub2")
        a("s_barrier")
        s.stamp(3, "tail")
        a(f"""
        v_lshrrev_b32 v12, 5, v1
        v_lshlrev_b32 v12, 15, v12
        v_and_b32 v13, 31, v1
        v_lshl_add_u32 v12, v13, 4, v12
        s_and_b32 s{S_T0}, s2, 1
        s_lshl_b32 s{S_T0}, s{S_T0}, 16
        s_lshl_b32 s{S_T1}, s{S_WAVE}, 9
        s_add_u32 s{S_T0}, s{S_T0}, s{S_T1}
        s_add_u32 s{S_T0}, s{S_T0}, {AP}
        """)
        for i in range(8):
            a(f"v_add_u32 v{112+i}, {4096*i}, v12")
        s.poll_masked([(f"buffer_load_dwordx4 {vr(64+4*i,4)}, v{112+i}, {sr(R_WS,4)}, s{S_T0} offen sc1", range(64+4*i, 68+4*i)) for i in range(8)], 16)
        s.stamp(4, "tail")
        for (x, y) in [(0,1),(2,3),(4,5),(6,7),(0,2),(4,6),(0,4)]:
            for h in range(2):
                a(f"v_pk_add_f32 {vr(64+4*x+2*h,2)}, {vr(64+4*x+2*h,2)}, {vr(64+4*y+2*h,2)}")
        a(f"""
        v_permlane32_swap_b32 v64, v66
        v_permlane32_swap_b32 v65, v67
        v_add_f32 v64, v64, v66
        v_add_f32 v65, v65, v67
        """)
        for q in range(2): s.rnd(64+q, 64+q)
        for q in range(2): a(f"v_mul_f32 v{64+q}, v{64+q}, v{40+q}")
        for q in range(2): s.rnd(64+q, 64+q)
        for q in range(2): a(f"v_add_f32 v{64+q}, v{64+q}, v{46+q}")
        for q in range(2): s.rnd(64+q, 64+q)
        a(f"v_lshlrev_b32 v13, 2, v11\nv_add_u32 v13, {L_HL}, v13")
        a(f"ds_write_b64 v13, v[64:65] offset:{L_X2-L_HL}")
        s.ln_reduce(64, 65, L_RED, 68)
        a("s_waitcnt lgkmcnt(0)")
        s.ln_finish(68)
        for q in range(2): a(f"v_sub_f32 v{66+q}, v{64+q}, v68")
        for q in range(2): s.rnd(66+q, 66+q)
        for q in range(2): a(f"v_mul_f32 v{66+q}, v{66+q}, v69")
        for q in range(2): s.rnd(66+q, 66+q)
        for q in range(2): a(f"v_mul_f32 v{66+q}, v{66+q}, v{44+q}")
        for q in range(2): s.rnd(66+q, 66+q)
        for q in range(2): a(f"v_add_f32 v{66+q}, v{66+q}, v{42+q}")
        for q in range(2): s.rnd(66+q, 66+q)
        a("ds_write_b64 v13, v[66:67]")
        s.ln_reduce(66, 67, L_RED + 64, 68)
        a(f"""
        s_lshr_b32 s{S_T0}, s2, 1
        s_lshl_b32 s{S_T0}, s{S_T0}, 5
        s_add_u32 s{S_T2}, s{S_T0}, {L_HL}
        v_mov_b32 v14, s{S_T2}
        ds_read_b128 v[80:83], v14
        ds_read_b128 v[84:87], v14 offset:16
        s_waitcnt lgkmcnt(0)
        """)
        s.ln_finish(68)
        for q in range(8): a(f"v_sub_f32 v{80+q}, v{80+q}, v68")
        for q in range(8): s.rnd(80+q, 80+q)
        for q in range(8): a(f"v_mul_f32 v{80+q}, v{80+q}, v69")
        for q in range(8): s.rnd(80+q, 80+q)
        for p in range(4): a(f"v_pk_mul_f32 {vr(88+2*p,2)}, {vr(80+2*p,2)}, {vr(80+2*p,2)}")
        for p in range(4): a(f"v_pk_mul_f32 {vr(96+2*p,2)}, {vr(88+2*p,2)}, {vr(80+2*p,2)}")
        s.stamp(5, "tail")
        a("v_mov_b32 v104, 1.0\nv_mov_b32 v105, 1.0")
        Y = 48; Z = 112; GG = 120
        for k in range(7):
            c = 160 + 6 * k
            for p in range(4):
                a(f"v_pk_fma_f32 {vr(Z+2*p,2)}, {vr(c,2)}, {vr(80+2*p,2)}, {vr(c,2)} op_sel:[1,0,0] op_sel_hi:[1,1,0]")
            for p in range(4):
                a(f"v_pk_fma_f32 {vr(Z+2*p,2)}, {vr(c+2,2)}, {vr(88+2*p,2)}, {vr(Z+2*p,2)} op_sel:[0,0,0] op_sel_hi:[0,1,1]")
            for p in range(4):
                a(f"v_pk_fma_f32 {vr(Z+2*p,2)}, {vr(c+2,2)}, {vr(96+2*p,2)}, {vr(Z+2*p,2)} op_sel:[1,0,0] op_sel_hi:[1,1,1]")
            for q in range(8): a(f"v_exp_f32 v{Z+q}, v{Z+q}")
            for p in range(4):
                a(f"v_pk_fma_f32 {vr(GG+2*p,2)}, {vr(c+4,2)}, {vr(80+2*p,2)}, {vr(c+4,2)} op_sel:[1,0,0] op_sel_hi:[1,1,0]")
            for p in range(4):
                a(f"v_pk_add_f32 {vr(Z+2*p,2)}, {vr(Z+2*p,2)}, v[104:105]")
            for q in range(8): a(f"v_rcp_f32 v{Z+q}, v{Z+q}")
            for p in range(4):
                if k == 0: a(f"v_pk_mul_f32 {vr(Y+2*p,2)}, {vr(GG+2*p,2)}, {vr(Z+2*p,2)}")
                else: a(f"v_pk_fma_f32 {vr(Y+2*p,2)}, {vr(GG+2*p,2)}, {vr(Z+2*p,2)}, {vr(Y+2*p,2)}")
        s.stamp(6, "tail")
        for q in range(4): a(f"v_permlane32_swap_b32 v{Y+q}, v{Y+4+q}")
        for q in range(4): a(f"v_add_f32 v{Y+q}, v{Y+q}, v{Y+4+q}")
        for q in range(2): a(f"v_permlane16_swap_b32 v{Y+q}, v{Y+2+q}")
        for q in range(2): a(f"v_add_f32 v{Y+q}, v{Y+q}, v{Y+2+q}")
        for k in [8, 4, 2, 1]:
            for q in range(2): s.red_row("add", Y+q, [k])
        a(f"""
        s_lshl_b32 s{S_T0}, s{S_WAVE}, 5
        v_lshl_add_u32 v12, v2, 3, s{S_T0}
        s_mov_b32 exec_lo, 0x00010001
        s_mov_b32 exec_hi, 0x00010001
        ds_write_b64 v12, {vr(Y,2)} offset:{L_RED+128}
        s_mov_b64 exec, -1
        s_waitcnt lgkmcnt(0)
        s_barrier
        s_cmp_lg_u32 s{S_WAVE}, 0
        s_cbranch_scc1 L_fin
        v_lshlrev_b32 v12, 2, v1
        ds_read_b32 v48, v12 offset:{L_RED+128}
        v_and_b32 v13, 7, v1
        v_lshl_add_u32 v13, v13, 2, s{S_T2}
        ds_read_b32 v49, v13 offset:{L_X2-L_HL}
        ds_read_b32 v50, v13 offset:{L_GB-L_HL}
        s_lshl_b32 s{S_B2}, s{S_B2}, 16
        s_waitcnt lgkmcnt(0)
        """)
        s.red_row("add", 48, [8]); s.red_16("add", 48, 51); s.red_32("add", 48, 51)
        s.rnd(48, 48)
        a(f"v_add_f32 v48, s{S_B2}, v48"); s.rnd(48, 48)
        a("v_mul_f32 v48, v48, v50"); s.rnd(48, 48)
        a("v_add_f32 v48, v48, v49")
        a("v_cvt_pk_bf16_f32 v48, v48, v48")
        s.srd(R_U, P_OUT, 4096)
        a(f"""
        v_lshlrev_b32 v12, 1, v1
        s_and_b32 s{S_T0}, s2, 1
        s_lshl_b32 s{S_T0}, s{S_T0}, 11
        s_lshr_b32 s{S_T1}, s2, 1
        s_lshl_b32 s{S_T1}, s{S_T1}, 4
        s_add_u32 s{S_T0}, s{S_T0}, s{S_T1}
        s_mov_b64 exec, 0xff
        buffer_store_short v48, v12, {sr(R_U,4)}, s{S_T0} offen
        s_cmp_lg_u32 s2, 0
        s_cbranch_scc1 L_noepo
        s_mov_b64 exec, 1
        v_mov_b32 v49, s{S_TAG}
        v_mov_b32 v50, {EPO}
        buffer_store_dword v49, v50, {sr(R_WS,4)}, 0 offen
        L_noepo:
        s_mov_b64 exec, -1
        """)
        a.label("L_fin")
        if s.stamps in ("x2", "x2b"):
            a(f"s_memrealtime s[{M0}:{M0+1}]\ns_waitcnt lgkmcnt(0)")
            a(f"s_cmp_lg_u32 s{S_WAVE}, 0\ns_cbranch_scc1 L_end")
            src = M0 if s.stamps == "x2" else S_ST + 2
            a(f"s_sub_u32 s{S_T0}, s{src}, s{S_ST}")
            a.label("L_spin")
            a(f"s_memrealtime s[{M0+2}:{M0+3}]\ns_waitcnt lgkmcnt(0)\ns_sub_u32 s{S_T1}, s{M0+2}, s{M0}\ns_cmp_lt_u32 s{S_T1}, s{S_T0}\ns_cbranch_scc1 L_spin")
        elif s.stamps == "dbg":
            a(f"s_memrealtime s[{M0}:{M0+1}]\ns_waitcnt lgkmcnt(0)")
            a(f"s_cmp_lg_u32 s{S_WAVE}, 0\ns_cbranch_scc1 L_end")
            a(f"s_not_b32 s{S_T0}, s{S_ST}\nv_mov_b32 v48, s{M0}\nv_mov_b32 v49, s{S_T0}\nv_mov_b32 v50, s{S_ST+2}\nv_mov_b32 v51, s{S_ST}\nv_mov_b32 v12, 0\ns_mov_b64 exec, 1")
            a(f"global_atomic_umax v12, v48, s[{P_DBG}:{P_DBG+1}]")
            a(f"global_atomic_umax v12, v49, s[{P_DBG}:{P_DBG+1}] offset:4")
            a(f"global_atomic_umax v12, v50, s[{P_DBG}:{P_DBG+1}] offset:8")
            a(f"global_atomic_umax v12, v51, s[{P_DBG}:{P_DBG+1}] offset:12")
        elif s.stamps:
            a(f"s_memrealtime s[{M0}:{M0+1}]\ns_waitcnt lgkmcnt(0)")
            for i in range(14): a(f"v_mov_b32 v{48+i}, s{S_ST+i}")
            a(f"v_mov_b32 v62, s{M0}\nv_mov_b32 v63, s{M0+1}")
            a(f"""
            s_lshl_b32 s{S_T0}, s2, 3
            s_add_u32 s{S_T0}, s{S_T0}, s{S_WAVE}
            s_lshl_b32 s{S_T0}, s{S_T0}, 6
            s_add_u32 s{S_T0}, s{S_T0}, {STAMP}
            v_mov_b32 v12, 0
            s_mov_b64 exec, 1
            """)
            for i in range(4):
                a(f"buffer_store_dwordx4 {vr(48+4*i,4)}, v12, {sr(R_WS,4)}, s{S_T0} offen offset:{16*i}")
        a("s_endpgm")

    def build(s):
        a = s.a
        if s.stamps:
            pass
        s.prologue()
        if s.stamps:
            pass
        s.w0(); s.w1(); s.w7()
        s.stream()
        s.tail()
        s.w2()
        a.label("L_end")
        a("s_endpgm")
        ref = open("adaLN_cond__gqa_block_cached__mixer_token_mlp__decode.s.ref").read()
        head = ref.split("; Override launch")[0]
        out = head + f"; @launch grid=(256,1,1) block=(512,1,1) lds={LDS_BYTES}\n"
        out += f""".amdgcn_target "amdgcn-amd-amdhsa--gfx950"
.text
.globl {NAME}
.p2align 8
.type {NAME},@function
{NAME}:
"""
        out += a.text()
        out += f""".section .rodata,"a"
.p2align 6
.amdhsa_kernel {NAME}
  .amdhsa_next_free_vgpr 256
  .amdhsa_next_free_sgpr 102
  .amdhsa_accum_offset 256
  .amdhsa_group_segment_fixed_size 0
  .amdhsa_kernarg_size 120
  .amdhsa_user_sgpr_count 2
  .amdhsa_user_sgpr_kernarg_segment_ptr 1
  .amdhsa_system_sgpr_workgroup_id_x 1
  .amdhsa_float_denorm_mode_32 3
.end_amdhsa_kernel
"""
        return out

if __name__ == "__main__":
    import argparse
    ap = argparse.ArgumentParser()
    ap.add_argument("-o", default="k.s"); ap.add_argument("--stamps", default=None); ap.add_argument("--nt", default="nt"); ap.add_argument("--fake", default=""); ap.add_argument("--rdepth", type=int, default=12); ap.add_argument("--depth", type=int, default=28)
    args = ap.parse_args()
    g = G(stamps=args.stamps, nt=args.nt, depth=args.depth, fake=args.fake, rdepth=args.rdepth)
    open(args.o, "w").write(g.build())
    print("nops inserted:", g.a.nops, "lines:", len(g.a.out))
```
